```python
import torch

def _softmax(x, axis=-1):
    return torch.softmax(x, dim=axis)

def _gelu(x):
    return torch.nn.functional.gelu(x, approximate='tanh')

def _silu(x):
    return torch.nn.functional.silu(x)

def _sigmoid(x):
    return torch.sigmoid(x)

def _layernorm(x, axis=-1, eps=1e-05):
    m = x.mean(dim=axis, keepdim=True)
    v = x.var(dim=axis, keepdim=True, unbiased=False)
    return (x - m) / torch.sqrt(v + eps)

def _scatter_add(tgt, idx, src, axis=0):
    return tgt.clone().index_add_(axis, idx, src)

def _segment_sum(src, seg, n):
    out = torch.zeros((n,) + src.shape[1:], dtype=src.dtype)
    return out.index_add_(0, seg, src)

def _pad(x, pw):
    flat = tuple((v for pair in reversed(pw) for v in pair))
    return torch.nn.functional.pad(x, flat)
kernel_name = 'concat_heads__memory_aug_recurrent_mem_tr__ssm_conv_h3__prompt'

def setup_inputs():

    _w = lambda a: (lambda t: t.to(torch.bfloat16) if t.is_floating_point() else t)(torch.as_tensor(a))

    def _A_setup():
        B, S, Dm = (1, 2048, 1024)
        H, Dh = (32, 128)
        M, seg = (8, 32)
        seg = min(seg, S)
        S = S // seg * seg
        return {'x': _w((lambda *s: torch.randn(*s, dtype=torch.bfloat16) * 0.05)(B, S, Dm)), 'mem0': _w((lambda *s: torch.randn(*s, dtype=torch.bfloat16) * 0.4)(B, M, Dm)), 'Wq': _w((lambda *s: torch.randn(*s, dtype=torch.bfloat16) * 6.4)(Dm, H, Dh) * Dm ** (-0.5)), 'Wk': _w((lambda *s: torch.randn(*s, dtype=torch.bfloat16) * 6.4)(Dm, H, Dh) * Dm ** (-0.5)), 'Wv': _w((lambda *s: torch.randn(*s, dtype=torch.bfloat16) * 0.4)(Dm, H, Dh) * Dm ** (-0.5)), 'Wo': _w((lambda *s: torch.randn(*s, dtype=torch.bfloat16) * 0.4)(H, Dh, Dm) * (H * Dh) ** (-0.5)), 'seg_len': seg}
    _A_in = _A_setup()

    def _B_setup():
        B, S, D = (1, 2048, 1024)
        ks = 4
        return {'q': _w((lambda *s: torch.randn(*s, dtype=torch.bfloat16) * 0.05)(B, S, D)), 'k': _w((lambda *s: torch.randn(*s, dtype=torch.bfloat16) * 0.4)(B, S, D)), 'v': _w((lambda *s: torch.randn(*s, dtype=torch.bfloat16) * 0.4)(B, S, D)), 'shift_k': _w((lambda *s: torch.randn(*s, dtype=torch.bfloat16) * 0.4)(D, ks) * 0.5), 'ssm_k': _w((lambda *s: torch.randn(*s, dtype=torch.bfloat16) * 0.4)(D, S) * (1.0 / S ** 0.5)), 'ssm_D': _w((lambda *s: torch.randn(*s, dtype=torch.bfloat16) * 0.4)(D))}
    _B_in = _B_setup()
    return {'A_x': _A_in['x'], 'A_mem0': _A_in['mem0'], 'A_Wq': _A_in['Wq'], 'A_Wk': _A_in['Wk'], 'A_Wv': _A_in['Wv'], 'A_Wo': _A_in['Wo'], 'A_seg_len': _A_in['seg_len'], 'B_q': _B_in['q'], 'B_k': _B_in['k'], 'B_v': _B_in['v'], 'B_shift_k': _B_in['shift_k'], 'B_ssm_k': _B_in['ssm_k'], 'B_ssm_D': _B_in['ssm_D']}

def reference(A_x, A_mem0, A_Wq, A_Wk, A_Wv, A_Wo, A_seg_len, B_q, B_k, B_v, B_shift_k, B_ssm_k, B_ssm_D):

    def _A_ref(x, mem0, Wq, Wk, Wv, Wo, seg_len):
        B, S, Dm = x.shape
        H, Dh = (Wq.shape[1], Wq.shape[2])
        M = mem0.shape[1]
        scale = Dh ** (-0.5)
        n_seg = S // seg_len
        L = M + seg_len
        idx = torch.arange(L)
        mask = (idx[:, None] < M) | (idx[:, None] >= idx[None, :])
        mem = mem0
        outs = []
        for s in range(n_seg):
            xs = x[:, s * seg_len:(s + 1) * seg_len, :].clone()
            h = torch.concatenate([mem, xs], axis=1)
            q = torch.einsum('btd,dhe->bhte', h, Wq)
            k = torch.einsum('btd,dhe->bhte', h, Wk)
            v = torch.einsum('btd,dhe->bhte', h, Wv)
            scores = torch.einsum('bhqe,bhke->bhqk', q, k) * scale
            scores = torch.where(mask[None, None], scores, -1000000000.0)
            p = _softmax(scores, axis=-1)
            o = torch.einsum('bhqk,bhke->bhqe', p, v)
            o = torch.einsum('bhte,hed->btd', o, Wo)
            mem = o[:, :M, :].clone()
            outs.append(o[:, M:, :])
        return torch.concatenate(outs, axis=1)

    def _B_ref(q, k, v, shift_k, ssm_k, ssm_D):
        B, S, D = q.shape
        ks = shift_k.shape[-1]
        k_pad = _pad(k, ((0, 0), (ks - 1, 0), (0, 0)))
        k_shift = torch.zeros_like(k)
        for t in range(ks):
            k_shift = k_shift + k_pad[:, t:t + S, :] * shift_k[:, ks - 1 - t][None, None, :]
        kv = k_shift * v
        L = 2 * S
        kv_pad = _pad(kv, ((0, 0), (0, S), (0, 0)))
        kf_pad = _pad(ssm_k, ((0, 0), (0, S)))
        kv_f = (lambda x, axes=(-2, -1): torch.fft.rfft2(x.float(), dim=axes))(kv_pad[:, None, :, :], axes=(1, 2))
        kf_f = (lambda x, axes=(-2, -1): torch.fft.rfft2(x.float(), dim=axes))(kf_pad[:, None, :], axes=(1, 2))
        kf_f = (lambda x, *d: x.permute(*d))(kf_f, 1, 2, 0)
        y_f = kv_f * kf_f[None, :, :, :]
        y = (lambda x, s, axes=(-2, -1): torch.fft.irfft2(x, s=s, dim=axes).to(torch.bfloat16))(y_f, (1, L), axes=(1, 2))[:, 0, :S, :]
        y = y + kv * ssm_D[None, None, :]
        return q * y
    a = _A_ref(A_x, A_mem0, A_Wq, A_Wk, A_Wv, A_Wo, A_seg_len)
    b = _B_ref(B_q, B_k, B_v, B_shift_k, B_ssm_k, B_ssm_D)
    return torch.concatenate([a, b], axis=-1)
```

```python
class Asm:
    def __init__(self):
        self.lines = []
        self.nlab = 0
    def __call__(self, s=""):
        for l in s.split("\n"):
            l = l.strip()
            if not l: continue
            if l.endswith(":"): self.lines.append(l)
            else: self.lines.append("    " + l)
    def label(self, base="L"):
        self.nlab += 1
        return f"{base}_{self.nlab}"
    def text(self):
        return "\n".join(self.lines) + "\n"
    def srd(self, d, base, nbytes):
        self(f"s_mov_b32 s{d}, s{base}")
        self(f"s_and_b32 s{d+1}, s{base+1}, 0xffff")
        self(f"s_mov_b32 s{d+2}, {nbytes}")
        self(f"s_mov_b32 s{d+3}, 0x20000")

def v(a, n=1):
    return f"v{a}" if n == 1 else f"v[{a}:{a+n-1}]"
def a_(a, n=1):
    return f"a{a}" if n == 1 else f"a[{a}:{a+n-1}]"
def s(a, n=1):
    return f"s{a}" if n == 1 else f"s[{a}:{a+n-1}]"

def header(launches):
    out = []
    for l in launches:
        out.append(l)
    out.append('.amdgcn_target "amdgcn-amd-amdhsa--gfx950"')
    out.append(".text")
    return "\n".join(out) + "\n"

def kernel_begin(name):
    return f".globl {name}\n.p2align 8\n.type {name},@function\n{name}:\n"

def descriptor(name, vgpr, accum, sgpr=102, kernarg=128, extra=""):
    return f""".amdhsa_kernel {name}
  .amdhsa_next_free_vgpr {vgpr}
  .amdhsa_next_free_sgpr {sgpr}
  .amdhsa_accum_offset {accum}
  .amdhsa_group_segment_fixed_size 0
  .amdhsa_kernarg_size {kernarg}
  .amdhsa_user_sgpr_count 2
  .amdhsa_user_sgpr_kernarg_segment_ptr 1
  .amdhsa_system_sgpr_workgroup_id_x 1
{extra}.end_amdhsa_kernel
"""
RODATA = '.section .rodata,"a"\n.p2align 6\n'
```

```python
from asmlib import *
import math, struct
MB = 1 << 20
WS_BYTES = 256 * MB
KVX = 0
KVM = 36 * MB
OBUF = 44 * MB
PART = 60 * MB
RING = 92 * MB
FLG = 94 * MB
FLG_KVX = FLG
FLG_KVM = FLG + 4096
FLG_O = FLG + 12288
FLG_P = FLG + 16384
STAT = FLG + 262144
E3B = 96 * MB
TRACE = 132 * MB
A_X, A_MEM0, A_WQ, A_WK, A_WV, A_WO, A_SEG, B_Q, B_K, B_V, B_SH, B_SSMK, B_D, D_OUT, D_DBG, D_WS = [8*i for i in range(16)]
SPIN = 400000
OOB = 0x7ffffff0
WS = 4; T0 = 8; T1 = 12; T2 = 16; DBG = 20
sW = 24; sX = 25; sJ = 26; sMODE = 27; sS = 28; sPAR = 29
sT = 32
sSPIN = 48; sC = 54; sPLO = 56; sPHI = 57; sPROG = 58
sRET = 63; sM = 64; sT0 = 76; sABT = 79; sST = 80
LDS_BYTES = 160 * 1024
L_TK = LDS_BYTES - 16

def f2u(x): return struct.unpack("<I", struct.pack("<f", x))[0]
CEXP = f2u((128 ** -0.5) * math.log2(math.e))

def nops(A, n):
    while n > 0:
        k = min(n, 16); A(f"s_nop {k-1}"); n -= k

def vexpr(A, dst, tmp, terms, sadd=None, const=0):
    first = True
    for (src, sh, nb, mul) in terms:
        cur = src
        if nb is None:
            if sh: A(f"v_lshrrev_b32 v{tmp}, {sh}, v{src}"); cur = tmp
        elif sh == 0:
            A(f"v_and_b32 v{tmp}, {(1<<nb)-1}, v{src}"); cur = tmp
        else:
            A(f"v_bfe_u32 v{tmp}, v{src}, {sh}, {nb}"); cur = tmp
        neg = mul < 0; m = abs(mul)
        if m & (m - 1) == 0 and not neg:
            k = m.bit_length() - 1
            if first: A(f"v_lshlrev_b32 v{dst}, {k}, v{cur}")
            else: A(f"v_lshl_add_u32 v{dst}, v{cur}, {k}, v{dst}")
        else:
            A(f"v_mul_u32_u24 v{tmp}, {m}, v{cur}")
            if first: A(f"v_sub_u32 v{dst}, 0, v{tmp}" if neg else f"v_mov_b32 v{dst}, v{tmp}")
            else: A(f"v_sub_u32 v{dst}, v{dst}, v{tmp}" if neg else f"v_add_u32 v{dst}, v{dst}, v{tmp}")
        first = False
    if first: A(f"v_mov_b32 v{dst}, 0")
    if sadd is not None: A(f"v_add_u32 v{dst}, s{sadd}, v{dst}")
    if const: A(f"v_add_u32 v{dst}, {const}, v{dst}")

def sexpr(A, dst, terms, const=0, tmp=sT+15):
    first = True
    for (src, sh, nb, mul) in terms:
        cur = src
        if nb is not None:
            A(f"s_bfe_u32 s{tmp}, s{src}, {hex((nb << 16) | sh)}"); cur = tmp
        elif sh:
            A(f"s_lshr_b32 s{tmp}, s{src}, {sh}"); cur = tmp
        if first: A(f"s_mul_i32 s{dst}, s{cur}, {mul}")
        else: A(f"s_mul_i32 s{tmp}, s{cur}, {mul}\n s_add_u32 s{dst}, s{dst}, s{tmp}")
        first = False
    if first: A(f"s_mov_b32 s{dst}, {const}")
    elif const: A(f"s_add_u32 s{dst}, s{dst}, {const}")

def ws(soff="0"): return f"s[{WS}:{WS+3}], {soff}"

def spin_dn(A):
    A(f"s_sub_u32 s{sSPIN}, s{sSPIN}, 1\n s_cbranch_scc1 L_abort")

def e3_off(A, dst, step):
    A(f"s_lshr_b32 s{sT+15}, s{step}, 3\n s_lshr_b32 s{sT+15}, s{sPAR}, s{sT+15}\n s_and_b32 s{sT+15}, s{sT+15}, 1\n s_lshl_b32 s{sT+15}, s{sT+15}, 13")
    A(f"s_lshl_b32 s{dst}, s{step}, 18\n s_add_u32 s{dst}, s{dst}, s{sT+15}\n s_add_u32 s{dst}, s{dst}, {E3B}")

def arrive(A):
    A(f"s_load_dwordx2 s[{sT+12}:{sT+13}], s[0:1], {D_DBG}\n s_lshl_b32 s{sT+15}, s{sX}, 5\n s_add_u32 s{sT+15}, s{sT+15}, 4\n s_mov_b32 s{sT+14}, 1\n s_waitcnt lgkmcnt(0)")
    A(f"s_atomic_add s{sT+14}, s[{sT+12}:{sT+13}], s{sT+15}\n s_waitcnt lgkmcnt(0)")

def wait_init(A, vt, vlane4, cfg):
    L = A.label("WI")
    A(f"s_mov_b32 s{sSPIN}, {SPIN}\n {L}:\n buffer_load_dword v{vt}, v{vlane4}, s[{DBG}:{DBG+3}], 0 offen sc1")
    spin_dn(A)
    A(f"s_waitcnt vmcnt(0)\n s_mov_b32 s{sT+14}, 0")
    for x in range(4, 8): A(f"v_readlane_b32 s{sT+15}, v{vt}, {8*x+1}\n s_add_u32 s{sT+14}, s{sT+14}, s{sT+15}")
    for w in range(4): A(f"v_readlane_b32 s{sT+8+w}, v{vt}, {16*w+3}\n s_lshr_b32 s{sT+15}, s{sT+8+w}, 20\n s_add_u32 s{sT+14}, s{sT+14}, s{sT+15}")
    A(f"s_cmp_lt_u32 s{sT+14}, {128+512}\n s_cbranch_scc1 {L}")
    A(f"s_mov_b32 s{sMODE}, 0")
    for x in range(4): A(f"v_readlane_b32 s{sT+15}, v{vt}, {8*x}\n s_cmp_lt_u32 s{sT+15}, 32\n s_cselect_b32 s{sMODE}, 1, s{sMODE}")
    A(f"s_mov_b32 s{sPAR}, 0")
    for b in range(8):
        A(f"s_bfe_u32 s{sT+15}, s{sT+8+b//2}, {hex((10 << 16) | (10*(b%2)))}\n s_cmp_gt_u32 s{sT+15}, 128\n s_cselect_b32 s{sT+15}, {1<<b}, 0\n s_or_b32 s{sPAR}, s{sPAR}, s{sT+15}")
    if cfg.flip: A(f"s_xor_b32 s{sPAR}, s{sPAR}, 0xff")
    if cfg.fmode: A(f"s_mov_b32 s{sMODE}, 1")

class Cfg:
    F1 = 18; F2 = 10; F3 = 80; paceA = 11; paceB = 11; QB = 44; ck = 3; svl = 4; slp0 = 6; VD = 6; K3 = 4
    stamps = 0; total = 0; skip = (('B', 1),); cur = 'A'; flip = 0; fmode = 0; fakex = 0; dev = 0
    roles = "rkqob"
    def __init__(self, **kw):
        for k, x in kw.items(): setattr(self, k, x)

def stamp(A, cfg, k):
    if cfg.stamps and (cfg.cur, k) not in cfg.skip: A(f"s_memtime s[{sST+2*k}:{sST+2*k+1}]")

def flush(A, cfg, vt):
    if not cfg.stamps: return
    A(f"s_memrealtime s[{sST+20}:{sST+21}]\n s_memtime s[{sST+18}:{sST+19}]\n s_waitcnt lgkmcnt(0)")
    sexpr(A, sT, [(sX,0,None,32*8*64*64), (sJ,0,None,8*64*64), (sW,0,None,64*64), (sS,0,None,64)], TRACE)
    for k in range(11): A(f"v_writelane_b32 v{vt}, s{sST+2*k}, {k}")
    A(f"v_writelane_b32 v{vt}, s{sRET}, 11")
    A(f"v_mbcnt_lo_u32_b32 v{vt+1}, -1, 0\n v_lshlrev_b32 v{vt+1}, 2, v{vt+1}\n s_mov_b64 exec, 0xfff\n buffer_store_dword v{vt}, v{vt+1}, {ws('s%d' % sT)} offen\n s_mov_b64 exec, -1")
```

```python
from common import *
sU = 62
RS = 4608 + 16
def xrow(ch): return ch*RS + (ch >> 3)*64
L_KF = 16*RS + 128
KFC = 4096 + 64
KFW = 2*KFC
assert L_KF + 8*KFW <= LDS_BYTES - 16 and KFC % 128 == 64

def emit_b(A, cfg):
    ln, t, u, ga, la, z = 1, 2, 3, 4, 5, 6
    K = 16; V = 64; SH = 96; ACC = 128; KS = 192
    A("L_b:\n s_barrier")
    A(f"s_load_dwordx4 s[{sT+8}:{sT+11}], s[0:1], {B_K}\n s_load_dwordx2 s[{sT+12}:{sT+13}], s[0:1], {B_SH}")
    A(f"v_mbcnt_lo_u32_b32 v{ln}, -1, 0\n v_mbcnt_hi_u32_b32 v{ln}, -1, v{ln}")
    sexpr(A, sT, [(sW,0,None,32*8*2048), (sU,0,None,32)])
    vexpr(A, ga, t, [(ln,1,None,8*2048), (ln,0,1,16)], sT)
    sexpr(A, sT, [(sW,0,None,-512)], 255*16)
    vexpr(A, la, t, [(ln,0,1,xrow(8)), (ln,1,None,-16)], sT)
    A("s_waitcnt lgkmcnt(0)")
    A.srd(T0, sT+8, 4*MB); A.srd(T1, sT+10, 4*MB); A.srd(T2, sT+12, 8192)
    sexpr(A, sT, [(sU,0,None,128)]); vexpr(A, u, t, [(ln,0,1,64)], sT)
    for i in range(4): A(f"buffer_load_dwordx4 {v(KS+4*i,4)}, v{u}, s[{T2}:{T2+3}], 0 offen offset:{16*i}")
    A(f"v_subrev_u32 v{u}, {3*2048}, v{ga}\n v_cmp_gt_u32 vcc, {3*2048}, v{ga}\n v_mov_b32 v{t}, {OOB}\n s_nop 0\n v_cndmask_b32 v{u}, v{u}, v{t}, vcc")
    for r in range(11):
        base, rr = (u, r) if r < 3 else (ga, r-3)
        A(f"s_mov_b32 s{sT}, {rr*2048}\n buffer_load_dwordx4 {v(K+4*r,4)}, v{base}, s[{T0}:{T0+3}], s{sT} offen")
    for r in range(8): A(f"s_mov_b32 s{sT}, {r*2048}\n buffer_load_dwordx4 {v(V+4*r,4)}, v{ga}, s[{T1}:{T1+3}], s{sT} offen")
    for i in range(4): A(f"v_mov_b32 v{z+2+i}, 0")
    sexpr(A, sT, [(sW,0,None,2*RS), (sW,2,1,64)], 4096)
    vexpr(A, u, t, [(ln,5,1,RS), (ln,0,5,16)], sT)
    A(f"ds_write_b128 v{u}, {v(z+2,4)}")
    sexpr(A, sT, [(sW,0,None,KFW)], L_KF)
    vexpr(A, u, t, [(ln,1,1,KFC), (ln,0,1,16)], sT)
    A(f"ds_write_b128 v{u}, {v(z+2,4)}")
    A("s_waitcnt vmcnt(19)")
    for c in range(8):
        for tp in range(4):
            src = KS + 2*c + (tp >> 1)
            A(f"v_and_b32 v{SH+4*c+tp}, 0xffff0000, v{src}" if tp & 1 else f"v_lshlrev_b32 v{SH+4*c+tp}, 16, v{src}")
    A("s_waitcnt vmcnt(0)")
    for c in range(8):
        def unp(dst, src): A(f"v_and_b32 v{dst}, 0xffff0000, v{src+(c>>1)}" if c & 1 else f"v_lshlrev_b32 v{dst}, 16, v{src+(c>>1)}")
        for r in range(11): unp(KS+r, K+4*r)
        for r in range(8):
            unp(KS+20+r, V+4*r)
            A(f"v_mul_f32 v{KS+12+r}, v{KS+r}, v{SH+4*c+3}")
            for i in range(1, 4): A(f"v_fmac_f32 v{KS+12+r}, v{KS+r+i}, v{SH+4*c+3-i}")
            A(f"v_mul_f32 v{KS+12+r}, v{KS+12+r}, v{KS+20+r}")
        o = ACC + 4*(c & 1)
        for d in range(4): A(f"v_cvt_pk_bf16_f32 v{o+d}, v{KS+12+7-2*d}, v{KS+12+6-2*d}")
        A(f"ds_write_b128 v{la}, {v(o,4)} offset:{c*RS}")
    A(f"s_load_dwordx4 s[{sT+8}:{sT+11}], s[0:1], {B_SSMK}\n s_load_dwordx2 s[{sT+12}:{sT+13}], s[0:1], {B_Q}\n s_waitcnt lgkmcnt(0)")
    A.srd(T0, sT+8, 4*MB); A.srd(T2, sT+10, 2048); A.srd(T1, sT+12, 4*MB)
    sexpr(A, sT, [(sU,0,None,32), (sW,0,None,4)])
    A(f"s_buffer_load_dword s{sM}, s[{T2}:{T2+3}], s{sT}")
    kg, kw, ar, br, yr = 7, 8, 9, 13, 14
    sexpr(A, sT, [(sU,0,None,16*4096), (sW,0,None,8192)]); vexpr(A, kg, t, [(ln,0,None,16)], sT)
    sexpr(A, sT, [(sW,0,None,KFW)], L_KF + 32); vexpr(A, kw, t, [(ln,0,None,16)], sT)
    vexpr(A, u, t, [(ln,0,4,1)], None, 1)
    sexpr(A, sT, [(sW,0,None,KFW)], L_KF)
    vexpr(A, ar, t, [(u,0,1,KFC), (u,1,None,4), (ln,4,2,16)], sT)
    for i in range(1, 4): A(f"v_add_u32 v{ar+i}, {1024*i}, v{ar}")
    sexpr(A, sT, [(sW,0,None,2*RS), (sW,2,1,64)], 2*(2032 - 256*7))
    vexpr(A, br, t, [(ln,4,2,16), (ln,0,4,-32)], sT)
    sexpr(A, sT, [(sW,0,None,2*RS), (sW,2,1,64)], 2*(2044 - 256*7))
    vexpr(A, yr, t, [(ln,4,2,-8), (ln,0,4,-32)], sT)
    A(f"s_mov_b32 s{sS}, 0\n s_waitcnt lgkmcnt(0)\n s_barrier")
    FA = [16, 80]; FB = [48, 112]; Y = 144; KL = 176
    A("L_b_ch:")
    A(f"s_lshl_b32 s{sT}, s{sS}, 12")
    for i in range(4):
        A(f"buffer_load_dwordx4 {v(KL+8*i,4)}, v{kg}, s[{T0}:{T0+3}], s{sT} offen offset:{1024*i}\n buffer_load_dword v{KL+8*i+4}, v{kg}, s[{T0}:{T0+3}], s{sT} offen offset:{1024*i+16}")
    for i in range(4):
        k = KL + 8*i
        A(f"s_waitcnt vmcnt({6-2*i})\n ds_write_b128 v{kw}, {v(k,4)} offset:{1024*i}")
        if i == 0:
            A(f"s_mov_b64 exec, 1\n v_lshlrev_b32 v{t}, 16, v{k}\n ds_write_b32 v{kw}, v{t} offset:{KFC-4}\n s_mov_b64 exec, -1")
        for d in range(4): A(f"v_alignbit_b32 v{KL+32+4*i+d}, v{k+d+1}, v{k+d}, 16")
        A(f"ds_write_b128 v{kw}, {v(KL+32+4*i,4)} offset:{KFC+1024*i}")
    def loads(rho):
        out = []
        for J in range(8):
            o = (J & 1)*128 + rho*16
            out.append([f"ds_read2_b32 {v(FA[rho&1]+4*J,2)}, v{ar+(J>>1)} offset0:{o} offset1:{o+1}", f"ds_read2_b32 {v(FA[rho&1]+4*J+2,2)}, v{ar+(J>>1)} offset0:{o+2} offset1:{o+3}",
                        f"ds_read_b128 {v(FB[rho&1]+4*J,4)}, v{br} offset:{512*(7-J)+64*rho}"])
        return [x for l in out for x in l]
    for x in loads(0): A(x)
    for rho in range(8):
        nxt = loads(rho+1) if rho < 7 else []
        A("s_waitcnt lgkmcnt(0)")
        n = 0
        for J in range(8):
            for T in range(J, 8):
                c = "0" if (rho == 0 and J == 0) else v(Y+4*T, 4)
                A(f"v_mfma_f32_16x16x32_bf16 {v(Y+4*T,4)}, {v(FA[rho&1]+4*J,4)}, {v(FB[rho&1]+4*(T-J),4)}, {c}")
                if nxt and n < 24: A(nxt[n]); n += 1
    for T in range(8): A(f"ds_read_b64 {v(16+2*T,2)}, v{yr} offset:{512*(7-T)}")
    A(f"s_lshl_b32 s{sT}, s{sM}, 16\n s_and_b32 s{sT+1}, s{sM}, 0xffff0000\n s_cmp_eq_u32 s{sS}, 0\n s_cselect_b32 s{sT}, s{sT}, s{sT+1}\n s_waitcnt lgkmcnt(0)")
    for T in range(8):
        for r in range(4):
            src = 16 + 2*T + (1 - (r >> 1))
            A(f"v_lshlrev_b32 v{t}, 16, v{src}" if r & 1 else f"v_and_b32 v{t}, 0xffff0000, v{src}")
            A(f"v_fmac_f32 v{Y+4*T+r}, s{sT}, v{t}")
        A(f"v_cvt_pk_bf16_f32 v{32+2*T}, v{Y+4*T+3}, v{Y+4*T+2}\n v_cvt_pk_bf16_f32 v{33+2*T}, v{Y+4*T+1}, v{Y+4*T}")
        A(f"ds_write_b64 v{yr}, {v(32+2*T,2)} offset:{512*(7-T)}")
    A(f"v_add_u32 v{br}, {RS}, v{br}\n v_add_u32 v{yr}, {RS}, v{yr}")
    A(f"s_add_u32 s{sS}, s{sS}, 1\n s_cmp_lt_u32 s{sS}, 2\n s_cbranch_scc1 L_b_ch")
    Q = 64; O = 96
    for r in range(8): A(f"s_mov_b32 s{sT}, {r*2048}\n buffer_load_dwordx4 {v(Q+4*r,4)}, v{ga}, s[{T1}:{T1+3}], s{sT} offen")
    A(f"s_load_dwordx2 s[{sT+8}:{sT+9}], s[0:1], {D_OUT}")
    sexpr(A, sT, [(sW,0,None,32*8*4096), (sU,0,None,32)], 2048)
    vexpr(A, u, t, [(ln,1,None,8*4096), (ln,0,1,16)], sT)
    A("s_waitcnt lgkmcnt(0)\n s_barrier")
    A.srd(T0, sT+8, 8*MB)
    for c in range(8): A(f"ds_read_b128 {v(16+4*c,4)}, v{la} offset:{c*RS}")
    A("s_waitcnt vmcnt(0) lgkmcnt(0)")
    for r in range(8):
        d, hi = (7 - r) >> 1, (7 - r) & 1
        for c in range(8):
            a, b = 128 + 2*(c & 1), 129 + 2*(c & 1)
            A(f"v_and_b32 v{a}, 0xffff0000, v{16+4*c+d}" if hi else f"v_lshlrev_b32 v{a}, 16, v{16+4*c+d}")
            A(f"v_and_b32 v{b}, 0xffff0000, v{Q+4*r+(c>>1)}" if c & 1 else f"v_lshlrev_b32 v{b}, 16, v{Q+4*r+(c>>1)}")
            A(f"v_mul_f32 v{a}, v{a}, v{b}")
            if c & 1: A(f"v_cvt_pk_bf16_f32 v{O+4*r+(c>>1)}, v128, v130")
        A(f"s_mov_b32 s{sT}, {r*4096}\n buffer_store_dwordx4 {v(O+4*r,4)}, v{u}, s[{T0}:{T0+3}], s{sT} offen")
    A("s_branch L_done")
```

```python
from common import *
sNB = 60; sKH = 61; sU = 62; sNF = 51; sFL = 68; sFL2 = 69; sPROG2 = 59; sM0 = 30; sSRC = 31; sOUT = 49; sE3 = 50; sEARLY = 52; sKX = 53; sKM = 55; sFIN = 66
L_EX = 131072
class G:
    xr = 1
    dm = 5
    exw = 7; exr = 8; st = 9; zero = 10; t = 11; a1 = 12; a2 = 13; a3 = 14; a4 = 15
    ACC = 16; XF = 32; RX = 56; E = 64; W = 128

def flag_add(A, n):
    L = A.label("FA")
    A(f"s_cmp_lg_u32 s{sW}, 0\n s_cbranch_scc1 {L}")
    if n == "min": A(f"s_min_u32 s{sT+3}, s{sS}, 1")
    else: A(f"s_mov_b32 s{sT+3}, {n}")
    A(f"s_atomic_add s{sT+3}, s[{WS}:{WS+1}], s{sNF}\n {L}:")

def prog_load(A, n, fl): A(f"s_buffer_load_dwordx{n} s[{sT+8}:{sT+7+n}], {ws('s%d' % fl)} glc")
def prog_min(A, n, prog):
    A(f"s_min_u32 s{prog}, s{sT+8}, s{sT+9}")
    for i in range(2, n): A(f"s_min_u32 s{prog}, s{prog}, s{sT+8+i}")
def prog_wait(A, n, fl, prog, need):
    L = A.label("PW"); D = A.label("PD")
    A(f"s_mov_b32 s{sSPIN}, {SPIN}\n {L}:\n s_cmp_ge_i32 s{prog}, s{need}\n s_cbranch_scc1 {D}")
    prog_load(A, n, fl); spin_dn(A); A("s_waitcnt lgkmcnt(0)"); prog_min(A, n, prog)
    A(f"s_branch {L}\n {D}:")

def prologue(A, cfg, kind):
    R = G
    ln, t = R.XF, R.XF+1
    A(f"v_and_b32 v{ln}, 63, v0\n v_mov_b32 v{R.zero}, 0\n s_and_b32 s{sNB}, s{sW}, 3\n s_lshr_b32 s{sKH}, s{sW}, 2")
    if kind == "k":
        sexpr(A, sU, [(sX,0,1,32), (sJ,0,None,1)])
        sexpr(A, sNF, [(sU,3,None,128), (sU,0,3,4)], FLG_KVX)
        sexpr(A, sT, [(sU,2,None,16384), (sU,0,2,2048), (sW,0,1,1024)])
        vexpr(A, R.a1, t, [(ln,0,None,16)], sT)
        for i in range(4): A(f"v_mov_b32 v{R.E+i}, -1")
        L = A.label("KI")
        sexpr(A, sT, [(sW,1,1,8192)], E3B)
        A(f"s_cmp_ge_u32 s{sW}, 4\n s_cbranch_scc1 {L}\n buffer_store_dwordx4 {v(R.E,4)}, v{R.a1}, {ws('s%d' % sT)} offen sc1\n {L}:")
    elif kind == "q": sexpr(A, sNF, [(sJ,3,None,128), (sJ,0,3,4)], FLG_O)
    else: sexpr(A, sNF, [(sJ,2,None,128), (sJ,0,2,4)], FLG_P)
    A(f"s_mov_b64 exec, 1\n buffer_store_dword v{R.zero}, v{R.zero}, {ws('s%d' % sNF)} offen sc1\n s_mov_b64 exec, -1")
    if kind == "k":
        A(f"s_load_dwordx4 s[{sT+8}:{sT+11}], s[0:1], {A_WK}\n s_waitcnt lgkmcnt(0)\n s_bitcmp1_b32 s{sU}, 0\n s_cselect_b64 s[{sT+8}:{sT+9}], s[{sT+10}:{sT+11}], s[{sT+8}:{sT+9}]")
        rs = 8192; sexpr(A, sT, [(sKH,0,None,512*rs), (sU,1,None,256), (sNB,0,None,64)])
    elif kind == "q":
        A(f"s_load_dwordx2 s[{sT+8}:{sT+9}], s[0:1], {A_WQ}\n s_waitcnt lgkmcnt(0)")
        rs = 8192; sexpr(A, sT, [(sKH,0,None,512*rs), (sJ,0,None,256), (sNB,0,None,64)])
    else:
        A(f"s_load_dwordx2 s[{sT+8}:{sT+9}], s[0:1], {A_WO}\n s_waitcnt lgkmcnt(0)")
        rs = 2048; sexpr(A, sT, [(sKH,0,None,512*rs), (sJ,0,2,1024*rs), (sJ,2,None,256), (sNB,0,None,64)])
    A.srd(T0, sT+8, 8*MB)
    wa = R.XF + 2
    vexpr(A, wa, t, [(ln,4,2,8*rs), (ln,0,4,4)], sT)
    A(f"s_mov_b32 s{sPLO}, 0x05040100\n s_mov_b32 s{sPHI}, 0x07060302")
    def issue(gp):
        for ks in (2*gp, 2*gp+1):
            for i in range(8):
                A(f"s_mov_b32 s{sT+8}, {(32*ks+i)*rs}\n buffer_load_dword v{R.W+8*ks+4*(i&1)+(i>>1)}, v{wa}, s[{T0}:{T0+3}], s{sT+8} offen")
    def fix(gp):
        for ks in (2*gp, 2*gp+1):
            for d in range(4):
                X, Y = R.W+8*ks+d, R.W+8*ks+4+d
                A(f"v_perm_b32 v{R.t}, v{Y}, v{X}, s{sPLO}\n v_perm_b32 v{Y}, v{Y}, v{X}, s{sPHI}\n v_mov_b32 v{X}, v{R.t}")
    for i in range(3): issue(i)
    L = A.label("GA")
    A(f"s_waitcnt vmcnt(48)\n s_barrier\n s_cmp_lg_u32 s{sW}, 0\n s_cbranch_scc1 {L}")
    arrive(A)
    A(f"{L}:")
    if kind in "kq":
        A(f"s_load_dwordx2 s[{sT+10}:{sT+11}], s[0:1], {A_X}")
        u = R.XF + 3
        A(f"v_bfe_u32 v{t}, v{ln}, 1, 3\n v_lshrrev_b32 v{u}, 4, v{ln}\n v_xor_b32 v{u}, v{u}, v{t}")
        sexpr(A, sT, [(sKH,0,None,32768 + 2048)])
        vexpr(A, R.xr, t, [(ln,3,1,1024), (ln,0,3,128), (u,0,None,16)], sT)
        A(f"v_xor_b32 v{R.xr+1}, 64, v{R.xr}\n v_xor_b32 v{R.xr+2}, 0x800, v{R.xr}\n v_xor_b32 v{R.xr+3}, 0x840, v{R.xr}")
        A(f"v_and_b32 v{t}, 7, v{ln}\n v_lshrrev_b32 v{u}, 4, v{ln}\n v_xor_b32 v{u}, v{u}, v{t}")
        sexpr(A, sT, [(sW,0,None,256)])
        vexpr(A, R.dm, t, [(ln,3,None,2048), (u,0,None,16)], sT)
        A(f"v_xor_b32 v{R.dm+1}, 64, v{R.dm}\n s_waitcnt lgkmcnt(0)")
        A.srd(T1, sT+10, 4*MB)
    else:
        A(f"s_load_dwordx2 s[{sT+10}:{sT+11}], s[0:1], {D_OUT}")
        sexpr(A, sT, [(sKH,0,None,32768 + 4096)])
        vexpr(A, R.xr, t, [(ln,0,None,16)], sT)
        A(f"v_xor_b32 v{R.xr+2}, 0x1000, v{R.xr}")
        sexpr(A, sT, [(sJ,0,2,65536), (sW,0,None,8192)], OBUF)
        vexpr(A, R.dm, t, [(ln,0,None,16)], sT)
        A("s_waitcnt lgkmcnt(0)")
        A.srd(T1, sT+10, 8*MB)
    sexpr(A, sT, [(sW,0,None,2048)], L_EX)
    vexpr(A, R.exw, t, [(ln,0,None,16)], sT)
    A(f"v_xor_b32 v{R.exr}, 0x2000, v{R.exw}")
    return ln, t, issue, fix

def weights_finish(A, cfg, ln, issue, fix):
    for i in range(8):
        if i + 3 < 8:
            A("s_waitcnt vmcnt(32)"); fix(i); issue(i+3)
        else:
            A(f"s_waitcnt vmcnt({16*(7-i)})"); fix(i)
    A(f"v_lshlrev_b32 v{ln}, 2, v{ln}")
    wait_init(A, G.t, ln, cfg)

def dma(A, kind, i):
    R = G
    if kind in "kq":
        A(f"s_add_u32 m0, s{sM0}, {1024*i}\n s_add_u32 s{sT+2}, s{sSRC}, {(i&3)*16384 + (i>>2)*128}")
        A(f"buffer_load_dwordx4 v{R.dm+(i&1)}, s[{T1}:{T1+3}], s{sT+2} offen lds")
    else:
        A(f"s_add_u32 m0, s{sM0}, {1024*i}\n s_add_u32 s{sT+2}, s{sSRC}, {1024*i}")
        A(f"buffer_load_dwordx4 v{R.dm}, {ws('s%d' % (sT+2))} offen sc1 lds")

def tile_setup(A, kind):
    A(f"s_add_u32 s{sT}, s{sS}, 1\n s_lshl_b32 s{sSRC}, s{sT}, {16 if kind in 'kq' else 18}\n s_and_b32 s{sT}, s{sT}, 1\n s_lshl_b32 s{sT}, s{sT}, 16\n s_lshl_b32 s{sM0}, s{sW}, 13\n s_add_u32 s{sM0}, s{sM0}, s{sT}")

def mainloop(A, kind, side=None):
    R = G
    def rd(i):
        ks, tl = i >> 1, i & 1
        if kind in "kq": A(f"ds_read_b128 {v(R.XF+4*(i%6),4)}, v{R.xr+2*tl+(ks&1)} offset:{(ks>>1)*4096}")
        else: A(f"ds_read_b128 {v(R.XF+4*(i%6),4)}, v{R.xr+2*tl} offset:{(ks>>2)*8192+(ks&3)*1024}")
    for i in range(5): rd(i)
    for i in range(32):
        ks, tl = i >> 1, i & 1
        A(f"s_waitcnt lgkmcnt({min(4, 31-i)})")
        for hf in range(2):
            acc = R.ACC + 8*tl + 4*hf
            A(f"v_mfma_f32_16x16x32_bf16 {v(acc,4)}, {v(R.W+8*ks+4*hf,4)}, {v(R.XF+4*(i%6),4)}, {'0' if ks == 0 else v(acc,4)}")
            if hf == 0 and i + 5 < 32: rd(i+5)
        if i % 2 == 0 and i < 16: dma(A, kind, i >> 1)
        if side: side(i)
    for k in ((0,1,2,3) if kind in "kq" else (0,2)): A(f"v_xor_b32 v{R.xr+k}, 0x10000, v{R.xr+k}")
    A("s_nop 3" if kind in "kq" else "s_nop 5")
    A(f"ds_write_b128 v{R.exw}, {v(R.ACC+8,4)}\n ds_write_b128 v{R.exw}, {v(R.ACC+12,4)} offset:1024")
    A("s_waitcnt vmcnt(0) lgkmcnt(0)\n s_barrier")
    A(f"ds_read_b128 {v(R.RX,4)}, v{R.exr}\n ds_read_b128 {v(R.RX+4,4)}, v{R.exr} offset:1024")

def combine_bf16(A, dst):
    R = G
    A("s_waitcnt lgkmcnt(0)")
    for i in range(4): A(f"v_pk_add_f32 {v(R.ACC+2*i,2)}, {v(R.ACC+2*i,2)}, {v(R.RX+2*i,2)}")
    for r in range(4): A(f"v_cvt_pk_bf16_f32 v{dst+r}, v{R.ACC+r}, v{R.ACC+4+r}")

def first_tile(A, kind):
    A(f"s_mov_b32 s{sS}, -1")
    tile_setup(A, kind)
    for i in range(8): dma(A, kind, i)
    A(f"s_mov_b32 s{sS}, 0")

def emit_kv(A, cfg):
    R = G
    A("L_kv:")
    ln, t, issue, fix = prologue(A, cfg, "k")
    sexpr(A, sT, [(sU,0,None,8192), (sKH,0,None,4096), (sNB,0,None,1024)], KVX)
    vexpr(A, R.st, t, [(ln,0,None,16)], sT)
    first_tile(A, "k")
    weights_finish(A, cfg, ln, issue, fix)
    A("L_kv_loop:\n s_barrier")
    tile_setup(A, "k")
    e3_off(A, sE3, sS)
    A(f"s_lshl_b32 s{sOUT}, s{sS}, 19")
    mainloop(A, "k")
    combine_bf16(A, R.RX)
    A(f"buffer_store_dwordx4 {v(R.RX,4)}, v{R.st}, {ws('s%d' % sOUT)} offen sc1")
    A(f"s_cmp_ge_u32 s{sW}, 2\n s_cbranch_scc1 L_kv_np\n buffer_store_dwordx4 {v(R.E,4)}, v{R.a1}, {ws('s%d' % sE3)} offen sc1\n L_kv_np:")
    flag_add(A, "min")
    A(f"s_add_u32 s{sS}, s{sS}, 1\n s_cmp_lt_u32 s{sS}, 64\n s_cbranch_scc1 L_kv_loop")
    A("s_waitcnt vmcnt(0)\n s_barrier")
    flag_add(A, 1)

def emit_q(A, cfg):
    R = G
    A("L_q:")
    ln, t, issue, fix = prologue(A, cfg, "q")
    KF = R.E; VF = R.E+12; MSK = R.E+24; SEL = R.E+32; ONES = R.E+40; PM = R.E+44; VMT = R.E+48; Q = R.E+56; P = R.E+60
    sexpr(A, sT, [(sJ,0,None,8192), (sKH,0,None,4096), (sNB,0,None,1024)], OBUF)
    vexpr(A, R.st, t, [(ln,0,None,16)], sT)
    sexpr(A, sT, [(sJ,0,None,16384), (sNB,0,None,1024)], KVX)
    vexpr(A, R.a1, t, [(ln,0,None,16)], sT)
    sexpr(A, sT, [(sJ,0,None,4096), (sNB,0,None,512)], KVM)
    vexpr(A, R.a2, t, [(ln,4,2,128), (ln,2,2,32), (ln,0,1,16)], sT)
    sexpr(A, sT, [(sW,0,None,3072)]); vexpr(A, R.a3, t, [(ln,0,None,16)], sT)
    sexpr(A, sT, [(sKH,0,None,4*3072)]); vexpr(A, R.a4, t, [(ln,0,None,16)], sT)
    sexpr(A, sFL, [(sJ,0,None,128)], FLG_KVM)
    u, w_ = R.XF+3, R.XF+4
    sexpr(A, sT, [(sKH,0,None,16)])
    vexpr(A, u, t, [(ln,0,4,1), (ln,4,2,-4)], sT)
    A(f"v_mov_b32 v{w_}, {hex(f2u(-1e30))}")
    for k in range(8): A(f"v_cmp_gt_i32 vcc, {16*(k>>2) + (k&3)}, v{u}\n s_nop 1\n v_cndmask_b32 v{MSK+k}, 0, v{w_}, vcc")
    vexpr(A, u, t, [(ln,0,4,1), (ln,4,2,-4)])
    A(f"v_mov_b32 v{w_}, 0x3f80\n v_mov_b32 v{t}, 0x3f800000")
    for d in range(4): A(f"v_cmp_eq_u32 vcc, {d}, v{u}\n s_nop 1\n v_cndmask_b32 v{SEL+d}, 0, v{w_}, vcc\n v_cndmask_b32 v{SEL+4+d}, 0, v{t}, vcc")
    for i in range(4): A(f"v_mov_b32 v{ONES+i}, 0x3f803f80")
    for i in range(12): A(f"v_mov_b32 v{PM+i}, 0")
    A(f"s_mov_b32 s{sC}, {hex(CEXP)}\n s_mov_b32 s{sPROG}, 0")
    first_tile(A, "q")
    weights_finish(A, cfg, ln, issue, fix)
    def kvloads():
        A(f"s_add_u32 s{sT+2}, s{sKX}, 4096\n s_add_u32 s{sT+3}, s{sKX}, 8192\n s_add_u32 s{sT+4}, s{sKX}, 12288")
        A(f"buffer_load_dwordx4 {v(KF+8,4)}, v{R.a2}, {ws('s%d' % sKM)} offen sc1\n buffer_load_dwordx4 {v(KF,4)}, v{R.a1}, {ws('s%d' % sKX)} offen sc1\n buffer_load_dwordx4 {v(KF+4,4)}, v{R.a1}, {ws('s%d' % (sT+2))} offen sc1")
        A(f"buffer_load_dwordx4 {v(VF+8,4)}, v{R.a2}, {ws('s%d' % sKM)} offen offset:2048 sc1\n buffer_load_dwordx4 {v(VF,4)}, v{R.a1}, {ws('s%d' % (sT+3))} offen sc1\n buffer_load_dwordx4 {v(VF+4,4)}, v{R.a1}, {ws('s%d' % (sT+4))} offen sc1")
    A("L_q_loop:\n s_barrier")
    tile_setup(A, "q")
    A(f"s_lshl_b32 s{sOUT}, s{sS}, 18\n s_lshl_b32 s{sKX}, s{sS}, 19\n s_lshl_b32 s{sKM}, s{sS}, 17")
    def side(i):
        if i == 17:
            A(f"s_cmp_gt_u32 s{sPROG}, s{sS}\n s_cselect_b32 s{sEARLY}, 1, 0\n s_cbranch_scc0 L_q_e0")
            kvloads()
            A("L_q_e0:")
        if i == 20: prog_load(A, 4, sFL)
    mainloop(A, "q", side)
    prog_min(A, 4, sPROG)
    combine_bf16(A, Q)
    flag_add(A, "min")
    A(f"s_cmp_lg_u32 s{sEARLY}, 0\n s_cbranch_scc1 L_q_e1\n s_add_u32 s{sT}, s{sS}, 1")
    prog_wait(A, 4, sFL, sPROG, sT)
    kvloads()
    A("L_q_e1:\n s_waitcnt vmcnt(3)")
    S0 = R.ACC
    def M(D, a, b, c): A(f"v_mfma_f32_16x16x32_bf16 {v(D,4)}, {v(a,4)}, {v(b,4)}, {c if isinstance(c, str) else v(c,4)}")
    M(S0, KF, Q, MSK); M(S0+4, KF+4, Q, MSK+4); M(S0+8, KF+8, Q, "0")
    A("s_waitcnt vmcnt(0)")
    T = R.XF
    for hf in range(2):
        for k in range(3): M(T+12*hf+4*k, VF+4*k, SEL+4*hf, "0")
    A(f"s_nop 1\n ds_write_b128 v{R.a3}, {v(S0,4)}\n ds_write_b128 v{R.a3}, {v(S0+4,4)} offset:1024\n ds_write_b128 v{R.a3}, {v(S0+8,4)} offset:2048")
    for hf in range(2):
        for k in range(2):
            for i in range(2): A(f"v_cvt_pk_bf16_f32 v{KF+4*hf+2*k+i}, v{T+12*hf+4*k+2*i}, v{T+12*hf+4*k+2*i+1}")
        A(f"v_cvt_pk_bf16_f32 v{VMT+4*hf}, v{T+12*hf+8}, v{T+12*hf+9}")
    A("s_waitcnt lgkmcnt(0)\n s_barrier")
    Z = [S0, T, T+12, VF]
    for p in range(4):
        A(f"ds_read_b128 {v(Z[p],4)}, v{R.a4} offset:{3072*p}\n ds_read_b128 {v(Z[p]+4,4)}, v{R.a4} offset:{3072*p+1024}\n ds_read_b64 {v(Z[p]+8,2)}, v{R.a4} offset:{3072*p+2048}")
    A(f"v_xor_b32 v{R.a3}, 0x10000, v{R.a3}\n v_xor_b32 v{R.a4}, 0x10000, v{R.a4}")
    for p in range(1, 4):
        A(f"s_waitcnt lgkmcnt({3*(3-p)})")
        for i in range(5): A(f"v_pk_add_f32 {v(S0+2*i,2)}, {v(S0+2*i,2)}, {v(Z[p]+2*i,2)}")
    m, mt, m2, m3 = R.RX, R.RX+1, R.RX+2, R.RX+3
    A(f"v_max3_f32 v{m}, v{S0}, v{S0+1}, v{S0+2}")
    for i in range(3): A(f"v_max3_f32 v{m}, v{m}, v{S0+3+2*i}, v{S0+4+2*i}")
    A(f"v_max_f32 v{mt}, v{m}, v{S0+9}\n v_max_f32 v{m}, v{m}, v{S0+9}\n s_nop 1\n v_permlane16_swap_b32 v{m}, v{mt}")
    A(f"v_max_f32 v{m2}, v{m}, v{mt}\n v_max_f32 v{m3}, v{m}, v{mt}\n s_nop 1\n v_permlane32_swap_b32 v{m2}, v{m3}")
    A(f"v_max_f32 v{m}, v{m2}, v{m3}\n v_mul_f32 v{m}, s{sC}, v{m}")
    for i in range(10): A(f"v_fma_f32 v{S0+i}, v{S0+i}, s{sC}, -v{m}")
    for i in range(10): A(f"v_exp_f32 v{S0+i}, v{S0+i}")
    for i in range(4): A(f"v_cvt_pk_bf16_f32 v{P+i}, v{S0+2*i}, v{S0+2*i+1}")
    A(f"v_cvt_pk_bf16_f32 v{PM}, v{S0+8}, v{S0+9}\n s_nop 1")
    Lr, O = R.RX+4, T
    M(Lr, ONES, P, "0"); M(Lr, ONES, PM, Lr)
    for hf in range(2): M(O+4*hf, KF+4*hf, P, "0"); M(O+4*hf, VMT+4*hf, PM, O+4*hf)
    A(f"s_nop 3\n v_rcp_f32 v{m}, v{Lr}\n s_nop 2")
    for i in range(8): A(f"v_mul_f32 v{O+i}, v{O+i}, v{m}")
    for r in range(4): A(f"v_cvt_pk_bf16_f32 v{Q+r}, v{O+r}, v{O+4+r}")
    A(f"buffer_store_dwordx4 {v(Q,4)}, v{R.st}, {ws('s%d' % sOUT)} offen sc1")
    A(f"s_add_u32 s{sS}, s{sS}, 1\n s_cmp_lt_u32 s{sS}, 64\n s_cbranch_scc1 L_q_loop")
    A("s_waitcnt vmcnt(0)\n s_barrier")
    flag_add(A, 1)
    A("s_branch L_done")

def emit_o(A, cfg):
    R = G
    A("L_o:")
    ln, t, issue, fix = prologue(A, cfg, "o")
    F = R.E
    sexpr(A, sT, [(sJ,2,None,65536), (sNB,0,None,16384), (sJ,0,2,4096), (sKH,0,None,2048)], PART)
    vexpr(A, R.st, t, [(ln,0,None,16)], sT)
    sexpr(A, sT, [(sJ,0,None,16384), (sKH,0,None,2048)], PART)
    vexpr(A, R.a1, t, [(ln,0,None,16)], sT)
    sexpr(A, sT, [(sKH,0,None,16*4096), (sJ,0,None,64)])
    vexpr(A, R.a2, t, [(ln,0,4,4096), (ln,4,2,16)], sT)
    sexpr(A, sFL, [(sJ,0,2,128)], FLG_O); sexpr(A, sFL2, [(sJ,2,None,128)], FLG_P)
    A(f"s_mov_b32 s{sPROG}, 0\n s_mov_b32 s{sPROG2}, 0")
    weights_finish(A, cfg, ln, issue, fix)
    A(f"s_mov_b32 s{sT}, 1")
    prog_wait(A, 8, sFL, sPROG, sT)
    first_tile(A, "o")
    A("s_waitcnt vmcnt(0)")
    def fin_load():
        A(f"s_lshl_b32 s{sT+4}, s{sFIN}, 19")
        for p in range(4):
            A(f"s_add_u32 s{sT+2}, s{sT+4}, {4096*p}\n buffer_load_dwordx4 {v(F+8*p,4)}, v{R.a1}, {ws('s%d' % (sT+2))} offen sc1\n buffer_load_dwordx4 {v(F+8*p+4,4)}, v{R.a1}, {ws('s%d' % (sT+2))} offen offset:1024 sc1")
    def fin_store():
        for (a, b) in ((0, 8), (16, 24), (0, 16)):
            for i in range(4): A(f"v_pk_add_f32 {v(F+a+2*i,2)}, {v(F+a+2*i,2)}, {v(F+b+2*i,2)}")
        for r in range(4): A(f"v_cvt_pk_bf16_f32 v{F+8+r}, v{F+r}, v{F+4+r}")
        A(f"s_lshl_b32 s{sT+2}, s{sFIN}, 17\n buffer_store_dwordx4 {v(F+8,4)}, v{R.a2}, s[{T1}:{T1+3}], s{sT+2} offen")
    A("L_o_loop:")
    A(f"s_add_u32 s{sT}, s{sS}, 2\n s_min_u32 s{sT}, s{sT}, 64")
    prog_wait(A, 8, sFL, sPROG, sT)
    A(f"s_sub_u32 s{sFIN}, s{sS}, 3\n s_cmp_lg_u32 s{sNB}, 0\n s_cselect_b32 s{sFIN}, -1, s{sFIN}\n s_add_u32 s{sT}, s{sFIN}, 1")
    prog_wait(A, 4, sFL2, sPROG2, sT)
    A("s_barrier")
    tile_setup(A, "o")
    A(f"s_lshl_b32 s{sOUT}, s{sS}, 19")
    def side(i):
        if i == 17:
            A(f"s_cmp_lt_i32 s{sFIN}, 0\n s_cbranch_scc1 L_o_f0"); fin_load(); A("L_o_f0:")
    mainloop(A, "o", side)
    A("s_waitcnt lgkmcnt(0)")
    for i in range(4): A(f"v_pk_add_f32 {v(R.ACC+2*i,2)}, {v(R.ACC+2*i,2)}, {v(R.RX+2*i,2)}")
    A(f"buffer_store_dwordx4 {v(R.ACC,4)}, v{R.st}, {ws('s%d' % sOUT)} offen sc1\n buffer_store_dwordx4 {v(R.ACC+4,4)}, v{R.st}, {ws('s%d' % sOUT)} offen offset:1024 sc1")
    flag_add(A, "min")
    A(f"s_cmp_lt_i32 s{sFIN}, 0\n s_cbranch_scc1 L_o_f1"); fin_store(); A("L_o_f1:")
    A(f"s_add_u32 s{sS}, s{sS}, 1\n s_cmp_lt_u32 s{sS}, 64\n s_cbranch_scc1 L_o_loop")
    A("s_waitcnt vmcnt(0)\n s_barrier")
    flag_add(A, 1)
    A(f"s_cmp_eq_u32 s{sNB}, 3\n s_cbranch_scc1 L_done\n s_add_u32 s{sFIN}, s{sNB}, 61\n s_add_u32 s{sT}, s{sFIN}, 1")
    prog_wait(A, 4, sFL2, sPROG2, sT)
    fin_load(); A("s_waitcnt vmcnt(0)"); fin_store()
    A("s_branch L_done")
```

```python
from common import *
import itertools
sRING = 30; sE3 = 31; sRINGP = 49; sPFB = 50; sNF = 51; sVX = 52; sKVM = 59; sW4 = 60; sG = 61; sJJ = 62; sD = 66; sFL = 68; sHA = 70
L_FB = 0
L_RA = 512
RAS = 3264
L_RB = L_RA + 4*RAS
L_KX = L_RB + 4*2048

def ring_off(A, dst, add):
    A(f"s_add_u32 s{dst}, s{sS}, {add}\n s_and_b32 s{dst}, s{dst}, 3\n s_lshl_b32 s{dst}, s{dst}, 18\n s_add_u32 s{dst}, s{dst}, {RING}")
def retry(A, cfg, k=1):
    spin_dn(A)
    if cfg.dev: A(f"s_add_u32 s{sRET}, s{sRET}, {k}")

def states():
    order = []
    for r in range(4):
        st = tuple((r + i) & 3 for i in range(4))
        while len(st) >= 2:
            order.append(st); st = st[1:]
    for n in (3, 2):
        for sub in itertools.combinations(range(4), n):
            for r in range(n):
                st = sub[r:] + sub[:r]
                if st not in order: order.append(st)
    return order
def nm(st): return "".join(map(str, st))

def ring_lines(A, dst, t, u, idx):
    sexpr(A, sT, [(sX,0,None,16384), (sJ,0,None,512)])
    sexpr(A, sT+1, [(sHA,0,None,6144), (sJ,0,2,1024)], 65536 - 32*16)
    sexpr(A, sT+2, [(sHA,0,None,6144), (sJ,0,2,512)], 65536 + 4096 - 96*16)
    A(f"v_mov_b32 v{t}, s{sT}\n v_mov_b32 v{u}, s{sT+1}\n v_cmp_le_u32 vcc, 32, v{idx}\n s_nop 1\n v_cndmask_b32 v{t}, v{t}, v{u}, vcc")
    A(f"v_mov_b32 v{u}, s{sT+2}\n v_cmp_le_u32 vcc, 0x60, v{idx}\n s_nop 1\n v_cndmask_b32 v{t}, v{t}, v{u}, vcc\n v_lshl_add_u32 v{dst}, v{idx}, 4, v{t}")

class RA:
    rvr = 0; idx = 1; e1ld = 2; e1st = 3; e3ld = 4; e3st = 5; raw = 6; rbr = 7; kv = 8; hk = 9; zero = 10; t = 11; T = 12; pubv = 13; vst = 14; stg = 15
    SEL = 16; rawv = 20; ACC = 24; MEM = 48; W = 64
STG = [RA.ACC+4*i for i in range(6)] + [RA.MEM+8, RA.MEM+12]

def stage_setup(A):
    A(f"s_add_u32 s{sD}, s{sS}, 1\n s_lshl_b32 s{sD}, s{sD}, 19\n s_add_u32 s{sD+1}, s{sD}, {524288+8192}")
def stage_load(A):
    for i in range(8): A(f"buffer_load_dwordx4 {v(STG[i],4)}, v{RA.kv}, {ws('s%d' % (sD+(i>>2)))} offen offset:{1024*(i&3)} sc1")
def stage_write(A):
    for i in range(8): A(f"ds_write_b128 v{RA.stg}, {v(STG[i],4)} offset:{1024*i}")

def emit_A_prologue(A, cfg):
    R = RA
    ln, t, u, w_, wa = R.ACC, R.ACC+1, R.ACC+2, R.ACC+3, R.ACC+4
    A(f"v_and_b32 v{ln}, 63, v0\n v_mov_b32 v{R.zero}, 0")
    A(f"s_load_dwordx4 s[{sT+8}:{sT+11}], s[0:1], {A_WQ}\n s_load_dwordx2 s[{sT+12}:{sT+13}], s[0:1], {A_WV}")
    sexpr(A, sT, [(sW4,0,None,256*8192), (sX,0,None,2048), (sJ,0,None,64)])
    vexpr(A, wa, t, [(ln,5,1,16*8192), (ln,4,1,8192), (ln,0,4,4)], sT)
    A(f"s_mov_b32 s{sPLO}, 0x05040100\n s_mov_b32 s{sPHI}, 0x07060302\n s_waitcnt lgkmcnt(0)")
    A.srd(T0, sT+8, 8*MB); A.srd(T1, sT+10, 8*MB); A.srd(T2, sT+12, 8*MB)
    def wreg(c, mat, hf, t8): return R.W + ((c*6) + mat*2 + hf)*8 + t8
    groups = [(c, mat) for c in range(4) for mat in range(3)]
    def issue(c, mat):
        sr = [T0, T1, T2][mat]
        for t8 in range(8):
            for b in range(2):
                d = 64*c + 32*(t8 >> 2) + 8*((t8 >> 1) & 1) + 2*(t8 & 1) + 4*b
                A(f"s_mov_b32 s{sT+8}, {d*8192}\n buffer_load_dword v{wreg(c,mat,b,t8)}, v{wa}, s[{sr}:{sr+3}], s{sT+8} offen")
    def fix(c, mat):
        for t8 in range(8):
            X, Y = wreg(c,mat,0,t8), wreg(c,mat,1,t8)
            A(f"v_perm_b32 v{R.t}, v{Y}, v{X}, s{sPLO}\n v_perm_b32 v{Y}, v{Y}, v{X}, s{sPHI}\n v_mov_b32 v{X}, v{R.t}")
    for i in range(3): issue(*groups[i])
    ring_lines(A, R.hk, t, u, 0)
    def e3addr(dst, vp, vL):
        A(f"v_lshlrev_b32 v{vL}, 7, v{vL}\n v_lshl_add_u32 v{vL}, v{vp}, 12, v{vL}\n v_and_b32 v{vL}, 0x3fff, v{vL}\n v_lshl_add_u32 v{vL}, v{vp}, 14, v{vL}")
        A(f"v_lshrrev_b32 v{vp}, 13, v{vL}\n v_lshlrev_b32 v{vp}, 14, v{vp}\n v_and_b32 v{vL}, 0x1fff, v{vL}\n v_add_u32 v{dst}, v{vp}, v{vL}")
    sexpr(A, sT, [(sX,0,None,2), (sG,0,None,1)]); sexpr(A, sT+1, [(sJJ,0,None,8), (sW4,0,None,2)])
    A(f"v_mov_b32 v{t}, s{sT}"); vexpr(A, u, w_, [(ln,5,1,1)], sT+1)
    e3addr(R.e3st, t, u)
    A(f"v_and_b32 v{t}, 31, v{ln}\n v_lshl_add_u32 v{R.e3st}, v{t}, 2, v{R.e3st}")
    sexpr(A, sT+1, [(sJ,0,None,4), (sW4,0,None,1)])
    A(f"v_lshrrev_b32 v{t}, 3, v{ln}\n v_mov_b32 v{u}, s{sT+1}")
    e3addr(R.e3ld, t, u)
    A(f"v_and_b32 v{t}, 7, v{ln}\n v_lshl_add_u32 v{R.e3ld}, v{t}, 4, v{R.e3ld}")
    sexpr(A, sT, [(sX,0,None,16384), (sJ,0,None,512), (sW4,0,None,128)])
    vexpr(A, R.e1st, t, [(ln,0,3,16), (ln,4,2,4)], sT)
    sexpr(A, sT, [(sX,0,None,16384), (sW4,0,None,4096)])
    vexpr(A, R.e1ld, t, [(ln,4,2,256), (ln,1,1,128), (ln,2,2,32), (ln,0,1,16)], sT)
    sexpr(A, sT, [(sHA,0,None,6144), (sJ,0,2,512), (sW4,0,None,256)], 65536 + 4096)
    vexpr(A, R.vst, t, [(ln,0,None,4)], sT)
    sexpr(A, sT, [(sHA,0,None,4096), (sJ,0,2,512), (sW4,0,None,256)], 2048)
    A(f"s_cmp_ge_u32 s{sW4}, 2\n s_cselect_b32 s{sT}, {OOB-512}, s{sT}")
    vexpr(A, R.pubv, t, [(ln,1,1,128), (ln,4,2,32), (ln,2,1,16), (ln,0,1,8), (ln,3,1,4)], sT)
    A(f"v_and_b32 v{t}, 2, v{ln}\n v_cmp_eq_u32 vcc, 0, v{t}\n v_mov_b32 v{R.idx}, 0xeeee\n v_mov_b32 v{u}, 0x4444\n v_cndmask_b32 v{R.idx}, v{R.idx}, v{u}, vcc")
    A(f"v_and_b32 v{t}, 1, v{ln}\n v_lshlrev_b32 v{t}, 4, v{t}\n v_mov_b32 v{u}, 0x3f80\n v_lshlrev_b32 v{u}, v{t}, v{u}\n v_cndmask_b32 v{u}, 0, v{u}, vcc\n v_bfe_u32 v{t}, v{ln}, 2, 2")
    for i in range(4): A(f"v_cmp_eq_u32 vcc, {i}, v{t}\n s_nop 1\n v_cndmask_b32 v{R.SEL+i}, 0, v{u}, vcc")
    sexpr(A, sT, [(sW4,0,None,RAS)], L_RA)
    vexpr(A, R.raw, t, [(ln,2,2,544), (ln,4,2,128), (ln,0,2,8)], sT)
    vexpr(A, R.rawv, t, [(ln,3,1,544), (ln,4,2,128), (ln,0,1,64), (ln,1,2,8)], sT, 4*544)
    sexpr(A, sT, [(sW4,0,None,256)], L_RB)
    vexpr(A, R.rbr, t, [(ln,5,1,1024), (ln,3,2,64), (ln,1,1,32), (ln,2,1,16), (ln,0,1,8)], sT)
    sexpr(A, sT, [(sX,0,None,8*16384), (sG,0,None,4*16384), (sW4,0,None,16384)])
    vexpr(A, R.kv, t, [(ln,0,None,16)], sT)
    sexpr(A, sT, [(sW4,0,None,8192)], L_KX)
    vexpr(A, R.stg, t, [(ln,0,None,16)], sT)
    sexpr(A, sT, [(sW4,0,1,544)], L_RA + 4*544)
    vexpr(A, R.rvr, t, [(ln,0,None,8)], sT)
    for i in range(12):
        if i + 3 < 12:
            A("s_waitcnt vmcnt(32)"); fix(*groups[i]); issue(*groups[i+3])
        else:
            A(f"s_waitcnt vmcnt({16*(11-i)})"); fix(*groups[i])
    A(f"s_load_dwordx2 s[{sT+8}:{sT+9}], s[0:1], {A_MEM0}")
    sexpr(A, sT, [(sJ,0,None,64), (sW4,1,1,32), (sW4,0,1,4)])
    vexpr(A, w_, t, [(ln,0,3,2048), (ln,4,1,16), (ln,5,1,2)], sT)
    A("s_waitcnt lgkmcnt(0)")
    A.srd(T0, sT+8, 16384)
    A(f"buffer_load_ushort v{R.T}, v{w_}, s[{T0}:{T0+3}], 0 offen\n buffer_load_ushort v{u}, v{w_}, s[{T0}:{T0+3}], 0 offen offset:8\n v_lshlrev_b32 v{wa}, 2, v{ln}")
    wait_init(A, t, wa, cfg)
    A(f"v_lshl_or_b32 v{R.T}, v{u}, 16, v{R.T}\n v_min_u32 v{R.T}, -2, v{R.T}")
    L = A.label("AT")
    A(f"s_cmp_ge_u32 s{sW4}, 2\n s_cbranch_scc1 {L}")
    for k in range(4): A(f"s_mov_b32 s{sT}, {RING + k*262144}\n buffer_load_dword v{R.t}, v{R.hk}, {ws('s%d' % sT)} offen sc1")
    A(f"{L}:\n s_barrier")
    A(f"s_mov_b32 s{sS}, -1")
    stage_setup(A); stage_load(A)
    A("s_waitcnt vmcnt(0)"); stage_write(A)
    A(f"s_mov_b32 s{sS}, 0\n s_mov_b32 s{sSPIN}, {SPIN}")
    ring_off(A, sRING, 0)

def emit_A_loop(A, cfg, nonlocal_):
    R = RA
    sc = " sc1" if nonlocal_ else ""
    P = "An" if nonlocal_ else "Al"
    m = R.MEM
    def S(c, u): A(f"v_smfmac_f32_16x16x64_bf16 {v(R.ACC+4*u,4)}, {v(m+4*c,4)}, {v(R.W+(c*6+u)*8,8)}, v{R.idx}")
    def ld(c): A(f"buffer_load_dwordx4 {v(m+4*c,4)}, v{R.e1ld}, {ws('s%d' % sRING)} offen offset:{1024*c} sc1")
    def chka(r): A(f"v_max3_u32 v{R.t}, v{r}, v{r+1}, v{r+2}")
    def chkb(r): A(f"v_max_u32 v{R.t}, v{R.t}, v{r+3}\n v_cmp_eq_u32 vcc, -1, v{R.t}")
    def add(mat, h):
        a0 = R.ACC + 8*mat; a1 = a0 + 4*h
        A(f"v_add_f32 v{a0+h}, v{a1}, v{a1+2}\n v_add_f32 v{a0+2+h}, v{a1+1}, v{a1+3}")
    def wr(mat):
        a0 = R.ACC + 8*mat
        o = 8*mat if mat < 2 else 0
        A(f"ds_write2_b64 v{R.raw if mat < 2 else R.rawv}, {v(a0,2)}, {v(a0+2,2)} offset0:{o} offset1:{o+4}")
    def red4(addr, stride, dst):
        for h in range(4): A(f"ds_read_b64 {v(m+2*h,2)}, v{addr} offset:{stride*h}")
        A(f"s_waitcnt lgkmcnt(2)\n v_pk_add_f32 {v(m,2)}, {v(m,2)}, {v(m+2,2)}\n s_waitcnt lgkmcnt(0)\n v_pk_add_f32 {v(m+4,2)}, {v(m+4,2)}, {v(m+6,2)}")
        A(f"v_pk_add_f32 {v(m,2)}, {v(m,2)}, {v(m+4,2)}\n v_cvt_pk_bf16_f32 v{dst}, v{m}, v{m+1}")
    A(f"{P}_tail:")
    add(1,1); wr(1)
    stamp(A, cfg, 3)
    add(2,0); add(2,1); wr(2)
    A(f"s_setprio 0\n s_cmp_ge_u32 s{sW4}, 2\n s_waitcnt lgkmcnt(0)\n s_barrier\n s_cbranch_scc1 {P}_v2")
    red4(R.rvr, RAS, R.T)
    A(f"buffer_store_dword v{R.T}, v{R.vst}, {ws('s%d' % sRING)} offen{sc}")
    A(f"{P}_v2:")
    stamp(A, cfg, 4)
    A(f"s_lshl_b32 s{sKVM}, s{sS}, 17\n s_add_u32 s{sKVM}, s{sKVM}, {KVM}")
    A(f"s_cmp_eq_u32 s{sS}, 63\n s_cbranch_scc1 L_rec_lastA")
    if cfg.total: A(f"s_cmp_lg_u32 s{sS}, 7\n s_cbranch_scc1 {P}_t0\n s_memtime s[{sT0}:{sT0+1}]\n s_waitcnt lgkmcnt(0)\n s_mov_b32 s{sRET}, 0\n {P}_t0:")
    ring_off(A, sRINGP, 3); e3_off(A, sE3, sS); ring_off(A, sRING, 1)
    stage_setup(A)
    A(f"s_mov_b32 s{sSPIN}, {SPIN}\n s_lshl_b32 s{sT+1}, s{sS}, 2\n s_add_u32 s{sT+1}, s{sT+1}, 4\n s_sleep {cfg.slp0}")
    flush(A, cfg, R.ACC)
    for i in range(4): A(f"v_mov_b32 v{m+i}, -1")
    A(f"s_setprio 3\n {P}_wb:\n ds_read_b32 v{R.t}, v{R.zero} offset:{L_FB}")
    spin_dn(A)
    A(f"s_waitcnt lgkmcnt(0)\n v_cmp_gt_u32 vcc, s{sT+1}, v{R.t}\n s_cbranch_vccnz {P}_wb")
    stamp(A, cfg, 6)
    A(f"s_cmp_ge_u32 s{sW4}, 2\n s_cbranch_scc1 {P}_h2\n buffer_store_dwordx4 {v(m,4)}, v{R.hk}, {ws('s%d' % sRINGP)} offen{sc}\n {P}_h2:")
    stage_load(A)
    A(f"s_add_u32 s{sS}, s{sS}, 1\n s_mov_b32 s{sSPIN}, {SPIN}")
    stamp(A, cfg, 5)
    A("s_barrier")
    red4(R.rbr, 2048, R.t)
    A(f"buffer_store_dword v{R.t}, v{R.e3st}, {ws('s%d' % sE3)} offen sc1")
    stamp(A, cfg, 7)
    A(f"buffer_store_dword v{R.T}, v{R.pubv}, {ws('s%d' % sKVM)} offen sc1")
    nops(A, cfg.F3)
    def ld3(): A(f"buffer_load_dwordx4 {v(m,4)}, v{R.e3ld}, {ws('s%d' % sE3)} offen sc1")
    ld3()
    A("s_waitcnt vmcnt(3)")
    stage_write(A)
    A("s_waitcnt vmcnt(0)")
    stamp(A, cfg, 8)
    A(f"{P}_r3:")
    A(f"v_mfma_f32_16x16x32_bf16 {v(m+4,4)}, {v(R.SEL,4)}, {v(m,4)}, 0")
    chka(m); chkb(m)
    A(f"s_cbranch_vccnz {P}_slow3\n s_nop 3")
    A(f"v_add_f32_dpp v{m+4}, v{m+4}, v{m+4} row_ror:8 row_mask:0xf bank_mask:0xf\n v_add_f32_dpp v{m+5}, v{m+5}, v{m+5} row_ror:8 row_mask:0xf bank_mask:0xf")
    A(f"v_cvt_pk_bf16_f32 v{R.T}, v{m+4}, v{m+5}")
    A(f"{P}_entry:")
    A(f"buffer_store_dword v{R.T}, v{R.e1st}, {ws('s%d' % sRING)} offen{sc}")
    stamp(A, cfg, 0)
    A("s_waitcnt lgkmcnt(0)")
    for i in range(12): A(f"v_mov_b64 {v(R.ACC+2*i,2)}, 0")
    nops(A, cfg.F1)
    late = []
    sts = states()
    for i, st in enumerate(sts):
        n = len(st); c = st[0]; rest = st[1:]
        if i == 0:
            stamp(A, cfg, 1)
            for k, cc in enumerate(st):
                ld(cc)
                if k < 3: nops(A, cfg.paceA)
            A("s_waitcnt vmcnt(3)")
            stamp(A, cfg, 2)
            chka(m+4*c); chkb(m+4*c)
            A(f"s_cbranch_vccnz {P}_f{nm(st)}")
        A(f"{P}_o{nm(st)}:")
        nx = rest[0]
        us = list(range(6)) if n > 2 else list(range(4))
        k = cfg.ck
        for u in us[:-k]: S(c, u)
        A(f"s_waitcnt vmcnt({n-2})"); chka(m+4*nx); S(c, us[-k]); chkb(m+4*nx)
        for u in us[len(us)-k+1:]: S(c, u)
        if n > 2:
            A(f"s_cbranch_vccnz {P}_f{nm(rest)}")
            if not (i + 1 < len(sts) and sts[i+1] == rest): A(f"s_branch {P}_o{nm(rest)}")
        else:
            fn = f"{nx}p{c}"
            A(f"s_cbranch_vccnz {P}_f{fn}")
            A(f"{P}_o{fn}:")
            S(nx,0); S(nx,1); S(nx,2); S(nx,3); S(c,4); S(c,5)
            A("s_nop 2")
            add(0,0); S(nx,4); add(0,1); S(nx,5); wr(0); add(1,0)
            A(f"s_branch {P}_tail")
            def ffin(fn=fn, nx=nx):
                A(f"{P}_f{fn}:"); ld(nx); retry(A, cfg)
                A("s_waitcnt vmcnt(0)"); chka(m+4*nx); chkb(m+4*nx)
                A(f"s_cbranch_vccz {P}_o{fn}\n s_branch {P}_f{fn}")
            late.append(ffin)
        def fgen(st=st, n=n, c=c, rest=rest):
            nxt = rest + (c,)
            A(f"{P}_f{nm(st)}:"); ld(c); retry(A, cfg)
            A(f"s_waitcnt vmcnt({n-1})"); chka(m+4*nxt[0]); chkb(m+4*nxt[0])
            A(f"s_cbranch_vccz {P}_o{nm(nxt)}\n s_branch {P}_f{nm(nxt)}")
        late.append(fgen)
    for f in late: f()
    A(f"{P}_slow3:")
    ld3(); retry(A, cfg, 0x10000)
    A(f"s_waitcnt vmcnt(0)\n s_branch {P}_r3")

class RB:
    pubk = 0; idx = 1; e2ld = 2; e2ld2 = 3; e2st = 4; rar = 5; rbw = 6; kxr = 7; vx = 8; zero = 9; t = 10; pub = 11; fl = 12; sigv = 13; siga = 14
    bias = 15; nm = 16; rl = 17; VMP = 18; PM = 26; ONES = 30; P = 36; L = 40; X0 = 44; X1 = 48; SM = 52; QK = 56; V = 72
    VM = 80; OUT = 96; VWX = 112; VX = 128; KX = 160; WO = 192
    P2 = 104

def vwx(A, hook=None):
    R = RB
    for kt in (1, 0):
        acc = R.OUT if kt else R.VM
        for t in range(4):
            for f in range(4):
                c = "0" if f == 0 else v(acc+4*t, 4)
                A(f"v_mfma_f32_16x16x32_bf16 {v(acc+4*t,4)}, {v(R.VX+(kt*4+f)*4,4)}, {v(R.WO+16*t+4*f,4)}, {c}")
                if kt == 0 and hook: hook(4*t + f)
    for kt in (1, 0):
        acc = R.OUT if kt else R.VM
        for t in range(4):
            for i in range(2): A(f"v_cvt_pk_bf16_f32 v{R.VWX+4*t+2*kt+i}, v{acc+4*t+2*i}, v{acc+4*t+2*i+1}")

def prog_load(A): A(f"s_buffer_load_dwordx8 s[{sT+8}:{sT+15}], {ws('s%d' % sFL)} glc")
def prog_min(A):
    A(f"s_min_u32 s{sPROG}, s{sT+8}, s{sT+9}")
    for i in range(2, 8): A(f"s_min_u32 s{sPROG}, s{sPROG}, s{sT+8+i}")
def prog_wait(A, need):
    L = A.label("KW"); D = A.label("KD")
    A(f"s_mov_b32 s{sSPIN}, {SPIN}\n {L}:\n s_cmp_ge_u32 s{sPROG}, s{need}\n s_cbranch_scc1 {D}")
    prog_load(A); spin_dn(A); A("s_waitcnt lgkmcnt(0)"); prog_min(A)
    A(f"s_branch {L}\n {D}:")

def emit_B_prologue(A, cfg):
    R = RB
    ln, t, u, w_ = R.X0, R.X0+1, R.X0+2, R.X0+3
    A(f"v_and_b32 v{ln}, 63, v0\n v_mov_b32 v{R.zero}, 0\n v_and_b32 v{w_}, 127, v0")
    sHB = sT + 7
    sexpr(A, sHB, [(sX,0,None,8), (sG,0,None,4), (sW4,0,None,1)])
    ring_lines(A, R.QK, t, u, w_)
    for i in range(4): A(f"v_mov_b32 v{R.OUT+i}, -1")
    sexpr(A, sT, [(sW4,1,1,2*262144)], RING)
    A(f"buffer_store_dwordx4 {v(R.OUT,4)}, v{R.QK}, {ws('s%d' % sT)} offen sc1\n s_add_u32 s{sT}, s{sT}, 262144\n buffer_store_dwordx4 {v(R.OUT,4)}, v{R.QK}, {ws('s%d' % sT)} offen sc1")
    sexpr(A, sNF, [(sHA,0,None,128), (sJ,0,2,4)], FLG_KVM)
    A(f"s_mov_b64 exec, 1\n buffer_store_dword v{R.zero}, v{R.zero}, {ws('s%d' % sNF)} offen sc1\n s_mov_b64 exec, -1")
    sexpr(A, sD, [(sW4,0,None,4*MB), (sX,1,1,16384), (sX,0,1,4096), (sJ,0,None,128)], E3B + 7*262144)
    vexpr(A, u, t, [(ln,5,1,2*MB), (ln,4,1,8192), (ln,0,4,8)])
    A(f"buffer_store_dwordx2 {v(R.OUT,2)}, v{u}, {ws('s%d' % sD)} offen sc1")
    A(f"s_load_dwordx2 s[{sT+12}:{sT+13}], s[0:1], {A_WO}\n s_load_dwordx2 s[{sM+8}:{sM+9}], s[0:1], {D_DBG}")
    sexpr(A, sT, [(sHB,0,None,128*2048), (sJJ,0,None,128)])
    vexpr(A, R.t, t, [(ln,4,2,8*2048), (ln,0,4,8)], sT)
    A(f"s_mov_b32 s{sPLO}, 0x05040100\n s_mov_b32 s{sPHI}, 0x07060302\n s_waitcnt lgkmcnt(0)")
    A.srd(T0, sT+12, 8*MB)
    TMP = R.VX
    for f in range(4):
        for i in range(8):
            A(f"s_mov_b32 s{sT}, {(32*f+i)*2048}\n buffer_load_dwordx2 {v(TMP+(f*8+i)*2,2)}, v{R.t}, s[{T0}:{T0+3}], s{sT} offen")
    A("s_waitcnt vmcnt(32)")
    A(f"s_mov_b32 s{sT+6}, {(1 << 20) + (1 << 10) + 1}")
    for b in range(2):
        for tr in range(2):
            A(f"s_add_u32 s{sT}, s{sD}, {b*2*MB + tr*8192 + tr*64}\n s_xor_b32 s{sT+1}, s{sT}, 8192\n s_mov_b32 s{sT+3}, 0")
            A(f"s_buffer_load_dword s{sT+2}, {ws('s%d' % sT)}\n s_buffer_load_dword s{sT+3}, {ws('s%d' % (sT+1))}\n s_waitcnt lgkmcnt(1)")
            A(f"s_cmp_eq_u32 s{sT+3}, 0\n s_cselect_b32 s{sT+4}, {1 << (10*b)}, 0\n s_waitcnt lgkmcnt(0)")
            A(f"s_{'add' if tr else 'sub'}_u32 s{sT+6}, s{sT+6}, s{sT+4}")
    sexpr(A, sT, [(sW4,0,None,64)], 12)
    A(f"s_atomic_add s{sT+6}, s[{sM+8}:{sM+9}], s{sT}")
    A(f"v_and_b32 v{t}, 2, v{ln}\n v_cmp_eq_u32 vcc, 0, v{t}\n v_mov_b32 v{R.idx}, 0xeeee\n v_mov_b32 v{u}, 0x4444\n v_cndmask_b32 v{R.idx}, v{R.idx}, v{u}, vcc")
    A(f"v_mov_b32 v{R.bias}, 0x7f800000\n v_cndmask_b32 v{R.bias}, v{R.bias}, v{R.zero}, vcc")
    for i in range(18): A(f"v_mov_b32 v{R.VMP+i}, 0")
    for i in range(4): A(f"v_mov_b32 v{R.ONES+i}, 0x3f803f80")
    A(f"s_mov_b32 s{sC}, {hex(CEXP)}")
    sexpr(A, sT, [(sHB,0,None,6144)], 65536)
    vexpr(A, R.e2ld, t, [(ln,0,None,16)], sT); A(f"v_add_u32 v{R.e2ld2}, 4096, v{R.e2ld}")
    sexpr(A, sT, [(sHB,0,None,16384)]); vexpr(A, R.vx, t, [(ln,0,None,16)], sT)
    sexpr(A, sT, [(sW4,0,None,8192)], L_KX); vexpr(A, R.kxr, t, [(ln,0,None,16)], sT)
    sexpr(A, sT, [(sW4,0,None,544)], L_RA); vexpr(A, R.rar, t, [(ln,0,None,8)], sT)
    sexpr(A, sT, [(sW4,0,None,2048)], L_RB); vexpr(A, R.rbw, t, [(ln,0,None,16)], sT)
    A(f"v_lshlrev_b32 v{R.siga}, 2, v{ln}\n v_mov_b32 v{R.sigv}, 1\n ds_write_b32 v{R.siga}, v{R.zero}")
    sexpr(A, sT, [(sHA,0,None,6144), (sJ,0,2,1024), (sW4,0,None,256)], 65536)
    vexpr(A, R.e2st, t, [(ln,0,None,4)], sT)
    sexpr(A, sT, [(sHA,0,None,4096), (sJ,0,2,512), (sW4,0,None,128)])
    vexpr(A, R.pubk, t, [(ln,4,2,32), (ln,2,1,16), (ln,0,2,4)], sT)
    A(f"v_and_b32 v{t}, 8, v{ln}\n v_cmp_eq_u32 vcc, 0, v{t}\n v_mov_b32 v{u}, {OOB}\n s_nop 0\n v_cndmask_b32 v{R.pubk}, v{R.pubk}, v{u}, vcc")
    sexpr(A, sPFB, [(sX,0,None,8*16384), (sG,0,None,4*16384), (sJJ,0,None,4096), (sW4,0,None,1024)], 2*524288)
    sexpr(A, sFL, [(sX,0,None,256), (sG,0,None,128)], FLG_KVX)
    A("s_waitcnt vmcnt(0)")
    for f in range(4):
        for i2 in range(4):
            X = TMP + (f*8+2*i2)*2; Y = X + 2
            for tt in range(4):
                A(f"v_perm_b32 v{R.WO+16*tt+4*f+i2}, v{Y+(tt>>1)}, v{X+(tt>>1)}, s{sPHI if tt & 1 else sPLO}")
    wait_init(A, t, R.siga, cfg)
    A(f"s_mov_b32 s{sPROG}, 0\n s_mov_b32 s{sT}, 2")
    prog_wait(A, sT)
    A("s_waitcnt lgkmcnt(0)\n s_barrier")
    for i in range(8):
        A(f"s_mov_b32 s{sT}, {8192+(i>>2)*4096}\n buffer_load_dwordx4 {v(R.VX+4*i,4)}, v{R.vx}, {ws('s%d' % sT)} offen offset:{(i&3)*1024} sc1")
    A("s_waitcnt vmcnt(0)")
    vwx(A)
    for i in range(4, 8):
        A(f"s_mov_b32 s{sT}, {524288+8192+4096}\n buffer_load_dwordx4 {v(R.VX+4*i,4)}, v{R.vx}, {ws('s%d' % sT)} offen offset:{(i&3)*1024} sc1")
        A(f"s_mov_b32 s{sT}, 4096\n buffer_load_dwordx4 {v(R.KX+4*i,4)}, v{R.vx}, {ws('s%d' % sT)} offen offset:{(i&3)*1024} sc1")
    A(f"s_mov_b32 s{sS}, 0")

def emit_B_loop(A, cfg, nonlocal_):
    R = RB
    sc = " sc1" if nonlocal_ else ""
    P = "Bn" if nonlocal_ else "Bl"
    regs6 = [R.QK+4*i for i in range(6)]
    def ld(i): A(f"buffer_load_dwordx4 {v(regs6[i],4)}, v{R.e2ld if i<4 else R.e2ld2}, {ws('s%d' % sRING)} offen offset:{1024*(i&3)} sc1")
    def zero():
        for i in range(8): A(f"v_mov_b64 {v(R.VM+2*i,2)}, 0")
    def chka(r): A(f"v_max3_u32 v{R.t}, v{r}, v{r+1}, v{r+2}")
    def chkb(r): A(f"v_max_u32 v{R.t}, v{R.t}, v{r+3}\n v_cmp_eq_u32 vcc, -1, v{R.t}")
    A(f"{P}_loop:")
    ring_off(A, sRING, 0)
    A(f"s_add_u32 s{sVX}, s{sS}, 1\n s_lshl_b32 s{sVX}, s{sVX}, 19\n s_lshl_b32 s{sKVM}, s{sS}, 17\n s_add_u32 s{sKVM}, s{sKVM}, {KVM}")
    zero()
    for i in range(6): A(f"v_mov_b64 {v(R.X0+2*i,2)}, 0")
    A(f"s_add_u32 s{sT}, s{sS}, 4\n s_min_u32 s{sT}, s{sT}, 64")
    prog_wait(A, sT)
    A(f"s_mov_b32 s{sSPIN}, {SPIN}\n s_waitcnt lgkmcnt(0)")
    stamp(A, cfg, 0)
    A("s_setprio 3\n s_barrier")
    o = R.OUT
    for w in range(4): A(f"ds_read_b64 {v(o+2*w,2)}, v{R.rar} offset:{RAS*w}")
    A(f"s_waitcnt lgkmcnt(2)\n v_pk_add_f32 {v(o,2)}, {v(o,2)}, {v(o+2,2)}\n s_waitcnt lgkmcnt(0)\n v_pk_add_f32 {v(o+4,2)}, {v(o+4,2)}, {v(o+6,2)}")
    A(f"v_pk_add_f32 {v(o,2)}, {v(o,2)}, {v(o+4,2)}")
    A(f"v_cvt_pk_bf16_f32 v{R.pub}, v{o}, v{o+1}\n buffer_store_dword v{R.pub}, v{R.e2st}, {ws('s%d' % sRING)} offen{sc}")
    stamp(A, cfg, 2)
    A(f"s_cmp_eq_u32 s{sS}, 63\n s_cbranch_scc1 L_rec_lastB")
    for k in range(4): A(f"ds_read_b128 {v(R.KX+4*k,4)}, v{R.kxr} offset:{1024*k}")
    for k in range(4): A(f"ds_read_b128 {v(R.VX+4*k,4)}, v{R.kxr} offset:{4096+1024*k}")
    nops(A, cfg.F2)
    X0, X1, SM = R.OUT, R.OUT+4, R.OUT+12
    def MS(k, f, last=False):
        D = (R.X0, R.X1, R.SM)[k]; q = R.QK + 4*f
        Aop = (R.KX+4*f, R.KX+16+4*f, q)[k]
        A(f"v_mfma_f32_16x16x32_bf16 {v((X0,X1,SM)[k] if last else D,4)}, {v(Aop,4)}, {v(q,4)}, {v(D,4)}")
    late = []
    sts = states(); done1 = set()
    for i, st in enumerate(sts):
        n = len(st); c = st[0]; rest = st[1:]
        if i == 0:
            for k, cc in enumerate(st):
                ld(cc)
                if k < 3: nops(A, cfg.paceB)
            A(f"s_waitcnt vmcnt(3) lgkmcnt(0)")
            stamp(A, cfg, 3)
            chka(R.QK+4*c); chkb(R.QK+4*c)
            A(f"s_cbranch_vccnz {P}_f{nm(st)}")
        A(f"{P}_o{nm(st)}:")
        nx = rest[0]
        if n > 2:
            MS(0, c); MS(1, c)
            A(f"s_waitcnt vmcnt({n-2})"); chka(R.QK+4*nx); chkb(R.QK+4*nx); MS(2, c)
            A(f"s_cbranch_vccnz {P}_f{nm(rest)}")
            if not (i + 1 < len(sts) and sts[i+1] == rest): A(f"s_branch {P}_o{nm(rest)}")
        else:
            MS(0, c); ld(4); MS(1, c); ld(5); MS(2, c)
            if nx in done1:
                A(f"s_branch {P}_k{nx}")
            else:
                done1.add(nx)
                A(f"{P}_k{nx}:\n s_waitcnt vmcnt(2)")
                MS(0, nx, True); chka(R.QK+4*nx); MS(1, nx, True); chkb(R.QK+4*nx); MS(2, nx, True)
                A(f"s_cbranch_vccz {P}_soft")
                ld(nx); ld(4); ld(5); retry(A, cfg)
                A(f"s_branch {P}_k{nx}")
        def fgen(st=st, n=n, c=c, rest=rest):
            nxt = rest + (c,)
            A(f"{P}_f{nm(st)}:"); ld(c); retry(A, cfg)
            A(f"s_waitcnt vmcnt({n-1})"); chka(R.QK+4*nxt[0]); chkb(R.QK+4*nxt[0])
            A(f"s_cbranch_vccz {P}_o{nm(nxt)}\n s_branch {P}_f{nm(nxt)}")
        late.append(fgen)
    for f in late: f()
    A(f"{P}_soft:")
    stamp(A, cfg, 4)
    A(f"ds_add_u32 v{R.siga}, v{R.sigv}")
    def SV(f, t): A(f"v_smfmac_f32_16x16x64_bf16 {v(R.VM+4*t,4)}, {v(R.V+4*f,4)}, {v(R.WO+16*t+8*f,8)}, v{R.idx}")
    m, mt, m2, m3 = R.L, R.L+1, R.L+2, R.L+3
    A("s_nop 1")
    A(f"v_max3_f32 v{m}, v{X0}, v{X0+1}, v{X0+2}\n v_max3_f32 v{m}, v{m}, v{X0+3}, v{X1}")
    A(f"v_max3_f32 v{m}, v{m}, v{X1+1}, v{X1+2}\n s_nop 0\n v_max3_f32 v{m}, v{m}, v{X1+3}, v{SM+2}")
    A(f"v_max_f32 v{mt}, v{m}, v{SM+3}\n v_max_f32 v{m}, v{m}, v{SM+3}\n s_nop 1")
    A(f"v_permlane16_swap_b32 v{m}, v{mt}")
    A(f"v_max_f32 v{m2}, v{m}, v{mt}\n v_max_f32 v{m3}, v{m}, v{mt}\n s_nop 1")
    sv = [(f, t) for f in range(2) for t in range(4)]
    def nextsv():
        if not sv: return
        f, t = sv.pop(0)
        if t == 0: A(f"s_waitcnt vmcnt({1-f})")
        SV(f, t)
    A(f"v_permlane32_swap_b32 v{m2}, v{m3}")
    A(f"v_max_f32 v{m}, v{m2}, v{m3}\n v_fma_f32 v{R.nm}, v{m}, s{sC}, v{R.bias}")
    stamp(A, cfg, 5)
    prs = [X0, X0+2, X1, X1+2, SM+2]
    dst = [R.P, R.P+1, R.P+2, R.P+3, R.PM]
    for i, p in enumerate(prs):
        if cfg.svl <= 2+2*i: nextsv()
        A(f"v_fma_f32 v{p}, v{p}, s{sC}, -v{R.nm}\n v_fma_f32 v{p+1}, v{p+1}, s{sC}, -v{R.nm}\n v_exp_f32 v{p}, v{p}")
        if cfg.svl <= 3+2*i: nextsv()
        A(f"v_exp_f32 v{p+1}, v{p+1}")
        if i > 0: A(f"v_cvt_pk_bf16_f32 v{dst[i-1]}, v{prs[i-1]}, v{prs[i-1]+1}")
    assert not sv
    stamp(A, cfg, 6)
    def dpp(d, s_): A(f"v_mov_b32_dpp v{d}, v{s_} quad_perm:[2,3,0,1] row_mask:0xf bank_mask:0xf")
    def vmadd(t):
        a = R.VM + 4*t
        A(f"v_add_f32 v{a}, v{a}, v{a+2}\n v_add_f32 v{a+1}, v{a+1}, v{a+3}")
    def vmcvt(t): A(f"v_cvt_pk_bf16_f32 v{R.VMP+2*t}, v{R.VM+4*t}, v{R.VM+4*t+1}")
    def M(D, Aop, Bop, first): A(f"v_mfma_f32_16x16x32_bf16 {v(D,4)}, {v(Aop,4)}, {v(Bop,4)}, {'0' if first else v(D,4)}")
    def fin(k):
        a = R.OUT + 4*k
        for i in range(4): A(f"v_mul_f32 v{a+i}, v{a+i}, v{R.rl}")
        A(f"ds_write_b128 v{R.rbw}, {v(a,4)} offset:{1024*k}")
    O0, O1 = R.OUT, R.OUT + 4
    A(f"v_cvt_pk_bf16_f32 v{R.PM}, v{SM+2}, v{SM+3}")
    A(f"{P}_fin:")
    dpp(R.P2, R.P)
    M(R.L, R.ONES, R.P, True); dpp(R.P2+1, R.P+1); dpp(R.P2+2, R.P+2)
    M(R.L, R.ONES+2, R.PM, False); dpp(R.P2+3, R.P+3); dpp(R.PM+2, R.PM)
    M(O0, R.VWX, R.P, True); vmadd(0)
    M(O0, R.VWX+4, R.P2, False); vmadd(1)
    vmcvt(0); vmcvt(1)
    M(O1, R.VWX+8, R.P, True)
    A(f"v_add_f32_dpp v{R.rl}, v{R.L}, v{R.L} quad_perm:[2,3,0,1] row_mask:0xf bank_mask:0xf")
    M(O0, R.VMP, R.PM, False); vmadd(2); vmadd(3)
    M(O1, R.VWX+12, R.P2, False); vmcvt(2); vmcvt(3)
    A(f"v_rcp_f32 v{R.rl}, v{R.rl}\n v_max3_u32 v{R.t}, v{R.V}, v{R.V+1}, v{R.V+2}")
    M(O1, R.VMP+4, R.PM, False)
    stamp(A, cfg, 7)
    fin(0)
    A(f"v_max3_u32 v{R.t}, v{R.t}, v{R.V+3}, v{R.V+4}\n v_max3_u32 v{R.t}, v{R.t}, v{R.V+5}, v{R.V+6}\n v_max_u32 v{R.t}, v{R.t}, v{R.V+7}")
    fin(1)
    A(f"v_cmp_eq_u32 vcc, -1, v{R.t}\n s_cbranch_vccnz {P}_slow")
    A("s_waitcnt lgkmcnt(0)\n s_barrier\n s_setprio 0")
    stamp(A, cfg, 8)
    A(f"buffer_store_dword v{R.pub}, v{R.pubk}, {ws('s%d' % sKVM)} offen sc1")
    A(f"s_cmp_lg_u32 s{sW4}, 3\n s_cbranch_scc1 {P}_nf\n s_min_u32 s{sT+3}, s{sS}, 1\n s_atomic_add s{sT+3}, s[{WS}:{WS+1}], s{sNF}\n {P}_nf:")
    A(f"s_add_u32 s{sT+2}, s{sVX}, s{sPFB}")
    for i in range(8): A(f"s_buffer_load_dword s{sT+1}, {ws('s%d' % (sT+2))} offset:{64*i}")
    A(f"s_add_u32 s{sVX+1}, s{sVX}, {4096 + 8192 + 524288}\n s_add_u32 s{sVX}, s{sVX}, 4096")
    nops(A, cfg.QB)
    def ldk(i): A(f"buffer_load_dwordx4 {v(R.KX+16+4*i,4)}, v{R.vx}, {ws('s%d' % sVX)} offen offset:{i*1024} sc1")
    def ldv(i): A(f"buffer_load_dwordx4 {v(R.VX+16+4*i,4)}, v{R.vx}, {ws('s%d' % (sVX+1))} offen offset:{i*1024} sc1")
    rest = [lambda i=i: ldk(i) for i in range(cfg.K3, 4)] + [lambda i=i: ldv(i) for i in range(4)]
    for i in range(cfg.K3): ldk(i)
    def hook(k):
        if k >= cfg.VD and rest: rest.pop(0)()
    vwx(A, hook)
    assert not rest
    A("s_waitcnt lgkmcnt(0)")
    for i in range(8, 16): A(f"s_buffer_load_dword s{sT+1}, {ws('s%d' % (sT+2))} offset:{64*i}")
    flush(A, cfg, R.OUT)
    A(f"s_add_u32 s{sS}, s{sS}, 1\n s_branch {P}_loop")
    A(f"{P}_slow:"); ld(4); ld(5); retry(A, cfg, 0x10000)
    zero()
    A(f"s_waitcnt vmcnt(0)")
    for f in range(2):
        for t in range(4): SV(f, t)
    A(f"s_nop 7\n s_branch {P}_fin")

def emit_rec(A, cfg):
    A(f"L_rec:\n s_and_b32 s{sW4}, s{sW}, 3\n s_lshr_b32 s{sG}, s{sJ}, 4\n s_and_b32 s{sJJ}, s{sJ}, 15")
    sexpr(A, sHA, [(sX,0,None,8), (sJ,2,None,1)])
    A(f"s_cmp_ge_u32 s{sW}, 4\n s_cbranch_scc1 L_rec_B")
    cfg.cur = 'A'
    emit_A_prologue(A, cfg)
    A(f"s_setprio 3\n s_cmp_lg_u32 s{sMODE}, 0\n s_cbranch_scc1 An_entry\n s_branch Al_entry")
    emit_A_loop(A, cfg, False)
    emit_A_loop(A, cfg, True)
    A("L_rec_lastA:")
    A(f"buffer_store_dword v{RA.T}, v{RA.pubv}, {ws('s%d' % sKVM)} offen sc1\n s_waitcnt vmcnt(0)\n s_barrier\n s_branch L_done")
    cfg.cur = 'B'
    A("L_rec_B:")
    emit_B_prologue(A, cfg)
    A(f"s_cmp_lg_u32 s{sMODE}, 0\n s_cbranch_scc1 Bn_loop")
    emit_B_loop(A, cfg, False)
    emit_B_loop(A, cfg, True)
    A("L_rec_lastB:")
    A(f"buffer_store_dword v{RB.pub}, v{RB.pubk}, {ws('s%d' % sKVM)} offen sc1\n s_waitcnt vmcnt(0)\n s_barrier")
    A(f"s_cmp_lg_u32 s{sW4}, 3\n s_cbranch_scc1 L_done\n s_mov_b32 s{sT+3}, 2\n s_atomic_add s{sT+3}, s[{WS}:{WS+1}], s{sNF}\n s_branch L_done")
```

```python
import sys
from common import *
import rec, gemm, convb
NAME = "concat_heads__memory_aug_recurrent_mem_tr__ssm_conv_h3__prompt_kernel"

def gen(cfg):
    A = Asm()
    A(f"s_cmp_ge_u32 s2, 256\n s_cbranch_scc1 L_end")
    A(f"s_load_dwordx4 s[{sT}:{sT+3}], s[0:1], {D_DBG}\n s_getreg_b32 s{sX}, hwreg(HW_REG_XCC_ID, 0, 3)\n v_lshrrev_b32 v1, 6, v0\n v_mov_b32 v5, {L_TK}")
    if cfg.dev: A(f"s_memrealtime s[{sM+10}:{sM+11}]\n s_mov_b32 s{sRET}, 0\n s_mov_b32 s{sABT}, 0\n s_mov_b32 s{sT0}, 0")
    if cfg.fakex: A(f"s_and_b32 s{sX}, s{sX}, {cfg.fakex}")
    A(f"v_readfirstlane_b32 s{sW}, v1\n s_waitcnt lgkmcnt(0)")
    A.srd(DBG, sT, 256); A.srd(WS, sT+2, WS_BYTES)
    A(f"s_cmp_lg_u32 s{sW}, 0\n s_cbranch_scc1 L_t1")
    A(f"s_lshl_b32 s{sT+4}, s{sX}, 5\n s_mov_b32 s{sJ}, 1\n s_atomic_add s{sJ}, s[{sT}:{sT+1}], s{sT+4} glc\n s_waitcnt lgkmcnt(0)")
    A(f"s_cmp_lt_u32 s{sJ}, 32\n s_cbranch_scc1 L_t0")
    A(f"s_mov_b32 s{sJ}, 1\n s_atomic_add s{sJ}, s[{sT}:{sT+1}], 8 glc\n v_lshlrev_b32 v2, 2, v0\n s_mov_b32 s{sSPIN}, {SPIN}\n s_waitcnt lgkmcnt(0)")
    A(f"L_t2:\n buffer_load_dword v3, v2, s[{DBG}:{DBG+3}], 0 offen sc1")
    spin_dn(A)
    A(f"s_waitcnt vmcnt(0)\n s_mov_b32 s{sT+4}, 0")
    for x in range(8): A(f"v_readlane_b32 s{sT+8+x}, v3, {8*x}\n s_add_u32 s{sT+4}, s{sT+4}, s{sT+8+x}")
    A(f"s_cmp_lt_u32 s{sT+4}, 256\n s_cbranch_scc1 L_t2")
    for x in range(8):
        A(f"s_min_u32 s{sT+4}, s{sT+8+x}, 32\n s_add_u32 s{sJ}, s{sJ}, s{sT+4}\n s_mov_b32 s{sX}, {x}\n s_cmp_lt_u32 s{sJ}, 32\n s_cbranch_scc1 L_t0\n s_sub_u32 s{sJ}, s{sJ}, 32")
    A("s_branch L_abort")
    A(f"L_t0:\n s_lshl_b32 s{sT+4}, s{sX}, 5\n s_add_u32 s{sT+4}, s{sT+4}, s{sJ}\n v_mov_b32 v4, s{sT+4}\n ds_write_b32 v5, v4\n s_waitcnt lgkmcnt(0)")
    A(f"L_t1:\n s_barrier\n ds_read_b32 v4, v5\n s_waitcnt lgkmcnt(0)\n v_readfirstlane_b32 s{sJ}, v4\n s_nop 3\n s_bfe_u32 s{sX}, s{sJ}, 0x30005\n s_and_b32 s{sJ}, s{sJ}, 31")
    A(f"s_cmp_lt_u32 s{sX}, 4\n s_cbranch_scc1 L_rec\n s_cmp_eq_u32 s{sX}, 6\n s_cbranch_scc1 L_q\n s_cmp_eq_u32 s{sX}, 7\n s_cbranch_scc1 L_o")
    gemm.emit_kv(A, cfg)
    if cfg.dev: A(f"s_memrealtime s[{sT0}:{sT0+1}]\n s_waitcnt lgkmcnt(0)")
    convb.emit_b(A, cfg)
    gemm.emit_q(A, cfg)
    gemm.emit_o(A, cfg)
    A("L_abort:")
    if cfg.dev: A(f"s_mov_b32 s{sABT}, 0xdead")
    A("L_done:")
    if cfg.dev:
        A(f"s_mov_b64 exec, -1\n s_waitcnt lgkmcnt(0)\n s_memtime s[{sST+10}:{sST+11}]\n s_memrealtime s[{sST+12}:{sST+13}]\n s_waitcnt lgkmcnt(0)\n s_sub_u32 s{sST+3}, s{sST+10}, s{sT0}")
        sexpr(A, sT, [(sX,0,None,32*8*32), (sJ,0,None,8*32), (sW,0,None,32)], STAT)
        A(f"v_mov_b32 v1, s{sT}\n v_mov_b32 v4, s{sM+10}\n v_mov_b32 v5, s{sST+12}\n v_mov_b32 v6, s{sT0}\n v_mov_b32 v7, s{sST+3}\n v_mov_b32 v8, s{sRET}\n v_mov_b32 v9, s{sABT}\n v_mov_b32 v10, s{sS}\n s_lshl_b32 s{sT}, s{sMODE}, 8\n s_or_b32 s{sT}, s{sT}, s{sPAR}\n v_mov_b32 v11, s{sT}")
        A(f"s_mov_b64 exec, 1\n buffer_store_dwordx4 v[4:7], v1, {ws()} offen\n buffer_store_dwordx4 v[8:11], v1, {ws()} offen offset:16\n s_waitcnt vmcnt(0)")
    A("L_end:\n s_endpgm")
    rec.emit_rec(A, cfg)
    head = open("header.txt").read()
    return head + header([f"; @launch grid=(256,1,1) block=(512,1,1) lds={LDS_BYTES}"]) + kernel_begin(NAME) + A.text() + RODATA + descriptor(NAME, 256, 256)

if __name__ == "__main__":
    kw = eval(sys.argv[2]) if len(sys.argv) > 2 else {}
    open(sys.argv[1], "w").write(gen(Cfg(**kw)))
```

```python
from asmlib import *
import math, struct
MB = 1 << 20
WS_BYTES = 256 * MB
KVX = 0
KVM = 36 * MB
OBUF = 44 * MB
PART = 60 * MB
RING = 92 * MB
FLG = 94 * MB
FLG_KVX = FLG
FLG_KVM = FLG + 4096
FLG_O = FLG + 12288
FLG_P = FLG + 16384
FLG_GO = FLG + 20480
STAT = FLG + 262144
E3B = 96 * MB
TRACE = 132 * MB
A_X, A_MEM0, A_WQ, A_WK, A_WV, A_WO, A_SEG, B_Q, B_K, B_V, B_SH, B_SSMK, B_D, D_OUT, D_DBG, D_WS = [8*i for i in range(16)]
SPIN = 400000
OOB = 0x7ffffff0
WS = 4; T0 = 8; T1 = 12; T2 = 16; DBG = 20
sW = 24; sX = 25; sJ = 26; sMODE = 27; sS = 28; sPAR = 29
sT = 32
sSPIN = 48; sC = 54; sPLO = 56; sPHI = 57; sPROG = 58
sGO = 3; sRET = 63; sM = 64; sT0 = 76; sABT = 79; sST = 80
LDS_BYTES = 160 * 1024
L_TK = LDS_BYTES - 16

def f2u(x): return struct.unpack("<I", struct.pack("<f", x))[0]
CEXP = f2u((128 ** -0.5) * math.log2(math.e))

def nops(A, n):
    while n > 0:
        k = min(n, 16); A(f"s_nop {k-1}"); n -= k

def vexpr(A, dst, tmp, terms, sadd=None, const=0):
    first = True
    for (src, sh, nb, mul) in terms:
        cur = src
        if nb is None:
            if sh: A(f"v_lshrrev_b32 v{tmp}, {sh}, v{src}"); cur = tmp
        elif sh == 0:
            A(f"v_and_b32 v{tmp}, {(1<<nb)-1}, v{src}"); cur = tmp
        else:
            A(f"v_bfe_u32 v{tmp}, v{src}, {sh}, {nb}"); cur = tmp
        neg = mul < 0; m = abs(mul)
        if m & (m - 1) == 0 and not neg:
            k = m.bit_length() - 1
            if first: A(f"v_lshlrev_b32 v{dst}, {k}, v{cur}")
            else: A(f"v_lshl_add_u32 v{dst}, v{cur}, {k}, v{dst}")
        else:
            A(f"v_mul_u32_u24 v{tmp}, {m}, v{cur}")
            if first: A(f"v_sub_u32 v{dst}, 0, v{tmp}" if neg else f"v_mov_b32 v{dst}, v{tmp}")
            else: A(f"v_sub_u32 v{dst}, v{dst}, v{tmp}" if neg else f"v_add_u32 v{dst}, v{dst}, v{tmp}")
        first = False
    if first: A(f"v_mov_b32 v{dst}, 0")
    if sadd is not None: A(f"v_add_u32 v{dst}, s{sadd}, v{dst}")
    if const: A(f"v_add_u32 v{dst}, {const}, v{dst}")

def sexpr(A, dst, terms, const=0, tmp=sT+15):
    first = True
    for (src, sh, nb, mul) in terms:
        cur = src
        if nb is not None:
            A(f"s_bfe_u32 s{tmp}, s{src}, {hex((nb << 16) | sh)}"); cur = tmp
        elif sh:
            A(f"s_lshr_b32 s{tmp}, s{src}, {sh}"); cur = tmp
        if first: A(f"s_mul_i32 s{dst}, s{cur}, {mul}")
        else: A(f"s_mul_i32 s{tmp}, s{cur}, {mul}\n s_add_u32 s{dst}, s{dst}, s{tmp}")
        first = False
    if first: A(f"s_mov_b32 s{dst}, {const}")
    elif const: A(f"s_add_u32 s{dst}, s{dst}, {const}")

def ws(soff="0"): return f"s[{WS}:{WS+3}], {soff}"

def spin_dn(A):
    A(f"s_sub_u32 s{sSPIN}, s{sSPIN}, 1\n s_cbranch_scc1 L_abort")

def e3_off(A, dst, step):
    A(f"s_lshr_b32 s{sT+15}, s{step}, 3\n s_lshr_b32 s{sT+15}, s{sPAR}, s{sT+15}\n s_and_b32 s{sT+15}, s{sT+15}, 1\n s_lshl_b32 s{sT+15}, s{sT+15}, 13")
    A(f"s_lshl_b32 s{dst}, s{step}, 18\n s_add_u32 s{dst}, s{dst}, s{sT+15}\n s_add_u32 s{dst}, s{dst}, {E3B}")

sAR = 72
def go_clear(A, vz, wave, sflag):
    L = A.label("GC")
    sexpr(A, sGO, [(sX,0,None,128)], FLG_GO)
    A(f"s_cmp_lg_u32 s{sW}, {wave}\n s_cbranch_scc1 {L}\n s_mov_b64 exec, 1\n buffer_store_dword v{vz}, v{vz}, {ws('s%d' % sGO)} offen sc1")
    A(f"buffer_store_dword v{vz}, v{vz}, {ws('s%d' % sflag)} offen sc1\n s_mov_b64 exec, -1\n {L}:")

def arrive(A):
    A(f"s_mov_b32 s{sAR}, 1\n s_atomic_add s{sAR}, s[{DBG}:{DBG+1}], 4")

def init_master(A, vt, va):
    L = A.label("IM")
    A(f"s_mov_b32 s{sSPIN}, {SPIN}\n {L}:\n s_mov_b32 s{sAR}, 0\n s_atomic_add s{sAR}, s[{DBG}:{DBG+1}], 4 glc")
    spin_dn(A)
    A(f"s_waitcnt lgkmcnt(0)\n s_cmp_lt_u32 s{sAR}, 256\n s_cbranch_scc1 {L}")
    A(f"v_mbcnt_lo_u32_b32 v{va}, -1, 0\n v_mbcnt_hi_u32_b32 v{va}, -1, v{va}\n v_lshlrev_b32 v{va}, 2, v{va}\n buffer_load_dword v{vt}, v{va}, s[{DBG}:{DBG+3}], 0 offen sc1\n s_waitcnt vmcnt(0)")
    A(f"v_readlane_b32 s{sAR}, v{vt}, 2\n s_nop 3\n s_cmp_lg_u32 s{sAR}, 0\n s_cselect_b32 s{sPAR}, 0x300, 0\n s_or_b32 s{sPAR}, s{sPAR}, 0x200")
    for b in range(8):
        A(f"v_readlane_b32 s{sAR}, v{vt}, {8*b+4}\n v_readlane_b32 s{sAR+1}, v{vt}, {8*b+5}\n s_nop 3\n s_cmp_gt_u32 s{sAR}, s{sAR+1}\n s_cselect_b32 s{sAR}, {1<<b}, 0\n s_or_b32 s{sPAR}, s{sPAR}, s{sAR}")
    A(f"v_lshlrev_b32 v{va}, 5, v{va}\n v_mov_b32 v{vt}, s{sPAR}\n s_mov_b32 s{sAR}, {FLG_GO}\n s_mov_b64 exec, 0xff")
    A(f"buffer_store_dword v{vt}, v{va}, {ws('s%d' % sAR)} offen sc1\n s_mov_b64 exec, -1")

def wait_init(A, vt, vz, cfg):
    L = A.label("WI")
    mark(A, cfg, 1)
    A(f"s_mov_b32 s{sSPIN}, {SPIN}\n {L}:\n buffer_load_dword v{vt}, v{vz}, {ws('s%d' % sGO)} offen sc1")
    spin_dn(A)
    E = A.label("WE")
    A(f"s_waitcnt vmcnt(0)\n v_readfirstlane_b32 s{sPAR}, v{vt}\n s_nop 3\n s_cmp_lg_u32 s{sPAR}, 0\n s_cbranch_scc1 {E}\n s_sleep 8\n s_branch {L}\n {E}:\n s_bfe_u32 s{sMODE}, s{sPAR}, 0x10008")
    if cfg.flip: A(f"s_xor_b32 s{sPAR}, s{sPAR}, 0xff")
    if cfg.fmode: A(f"s_mov_b32 s{sMODE}, 1")
    mark(A, cfg, 2)

class Cfg:
    F1 = 18; F2 = 10; F3 = 80; paceA = 11; paceB = 11; QB = 44; ck = 3; svl = 4; slp0 = 6; VD = 6; K3 = 4
    stamps = 0; total = 0; skip = (('B', 1),); cur = 'A'; flip = 0; fmode = 0; fakex = 0; dev = 0; marks = 0; xpf = 1; wdel = 0; kst = 16; dstep = [1,3,5,7,9,11,13,15]; dstepq = [1,3,5,7,9,11,13,15]; kvstep = [17,18,19,20,21,22]; wpf = 1; xa = 1; abl = ''; pp = 0; burst = 16; burstq = 8; xsl = 0; ymid = 6; bursto = 16; otouch = 1; osl = 2; ntr = 8; xrot = 15; ost = 16
    roles = "rkqob"
    def __init__(self, **kw):
        for k, x in kw.items(): setattr(self, k, x)

def stamp(A, cfg, k):
    if cfg.stamps and (cfg.cur, k) not in cfg.skip: A(f"s_memtime s[{sST+2*k}:{sST+2*k+1}]")

def flush(A, cfg, vt):
    if not cfg.stamps: return
    A(f"s_memrealtime s[{sST+20}:{sST+21}]\n s_memtime s[{sST+18}:{sST+19}]\n s_waitcnt lgkmcnt(0)")
    sexpr(A, sT, [(sX,0,None,32*8*64*64), (sJ,0,None,8*64*64), (sW,0,None,64*64), (sS,0,None,64)], TRACE)
    for k in range(11): A(f"v_writelane_b32 v{vt}, s{sST+2*k}, {k}")
    A(f"v_writelane_b32 v{vt}, s{sRET}, 11")
    A(f"v_mbcnt_lo_u32_b32 v{vt+1}, -1, 0\n v_lshlrev_b32 v{vt+1}, 2, v{vt+1}\n s_mov_b64 exec, 0xfff\n buffer_store_dword v{vt}, v{vt+1}, {ws('s%d' % sT)} offen\n s_mov_b64 exec, -1")

def mark(A, cfg, k, step=None):
    if not cfg.marks: return
    if step is None: A(f"s_memrealtime s[{sST+2*k}:{sST+2*k+1}]\n s_waitcnt lgkmcnt(0)")
    else:
        L = A.label("MK")
        A(f"s_cmp_lg_u32 s{sS}, {step}\n s_cbranch_scc1 {L}\n s_memrealtime s[{sST+2*k}:{sST+2*k+1}]\n s_waitcnt lgkmcnt(0)\n {L}:")
```

```python
from common import *
sNB = 60; sKH = 61; sU = 62; sNF = 51; sFL = 68; sFL2 = 69; sPROG2 = 59; sM0 = 30; sSRC = 31; sOUT = 49; sE3 = 50; sEARLY = 52; sKX = 53; sKM = 55; sFIN = 66; sFV = 74
L_EX = 131072
class G:
    fa = 0
    xr = 1
    dm = 5
    exw = 7; exr = 8; st = 9; zero = 10; t = 11; a1 = 12; a2 = 13; a3 = 14; a4 = 15
    ACC = 16; RX = 32; XF = 40; E = 72; W = 128

class LQ:
    def __init__(self, A): self.A = A; self.q = []
    def op(self, text, tag=None): self.A(text); self.q.append(tag)
    def wait(self, tag):
        if tag not in self.q: return
        i = len(self.q) - 1 - self.q[::-1].index(tag)
        n = len(self.q) - 1 - i
        assert n <= 15
        self.A(f"s_waitcnt lgkmcnt({n})"); self.q = self.q[i+1:]
    def drain(self): self.q = []

def flag_set(A, add, wave=0):
    L = A.label("FA")
    A(f"s_cmp_lg_u32 s{sW}, {wave}\n s_cbranch_scc1 {L}\n s_add_u32 s{sFV}, s{sS}, {add}\n s_atomic_smax s{sFV}, s[{WS}:{WS+1}], s{sNF}\n {L}:")

def prog_load(A, fl): A(f"buffer_load_dword v{G.t}, v{G.fa}, {ws('s%d' % fl)} offen sc1")
def prog_min(A, n, prog):
    A(f"v_min_u32_dpp v{G.t}, v{G.t}, v{G.t} quad_perm:[1,0,3,2] row_mask:0xf bank_mask:0xf\n s_nop 1\n v_min_u32_dpp v{G.t}, v{G.t}, v{G.t} quad_perm:[2,3,0,1] row_mask:0xf bank_mask:0xf")
    if n == 8: A(f"s_nop 1\n v_min_u32_dpp v{G.t}, v{G.t}, v{G.t} row_ror:4 row_mask:0xf bank_mask:0xf")
    A(f"s_nop 0\n v_readfirstlane_b32 s{prog}, v{G.t}\n s_nop 3")
def prog_wait(A, n, fl, prog, need):
    L = A.label("PW"); D = A.label("PD")
    A(f"s_cmp_ge_i32 s{prog}, s{need}\n s_cbranch_scc1 {D}\n s_mov_b32 s{sSPIN}, {SPIN}\n {L}:")
    prog_load(A, fl); spin_dn(A); A("s_waitcnt vmcnt(0)"); prog_min(A, n, prog)
    A(f"s_cmp_ge_i32 s{prog}, s{need}\n s_cbranch_scc1 {D}\n s_sleep 2\n s_branch {L}\n {D}:")

def probe(A, cfg, ln, t, after_ack):
    R = G
    sexpr(A, sT+4, [(sW,0,2,1), (sU,2,1,4)])
    sexpr(A, sT+5, [(sT+4,0,None,2*MB), (sU,0,None,256)], E3B + 7*262144)
    vexpr(A, R.E+4, t, [(ln,5,1,8192), (ln,0,5,8)])
    Ls = A.label("PS")
    A(f"s_cmp_ge_u32 s{sW}, 4\n s_cbranch_scc1 {Ls}\n v_mov_b32 v{R.E}, -1\n v_mov_b32 v{R.E+1}, -1\n buffer_store_dwordx2 {v(R.E,2)}, v{R.E+4}, {ws('s%d' % (sT+5))} offen sc1\n {Ls}:\n s_barrier\n s_waitcnt vmcnt(0)")
    after_ack()
    Ls = A.label("PS")
    A(f"s_cmp_ge_u32 s{sW}, 4\n s_cbranch_scc1 {Ls}\n s_mov_b64 s[{sT+6}:{sT+7}], 0")
    A("s_setprio 3")
    for tr in range(cfg.ntr):
        L = A.label("PL"); p = tr & 1
        A(f"s_add_u32 s{sT}, s{sT+5}, {p*8192 + (tr>>1)*64}\n s_mov_b32 s{sT+2}, 0\n s_mov_b32 s{sT+3}, 0xffff\n s_buffer_load_dword s{sT+2}, {ws('s%d' % sT)}")
        A(f"{L}:\n s_sub_u32 s{sT+3}, s{sT+3}, 1\n s_cmp_lt_u32 s{sT+2}, s{sT+3}\n s_cbranch_scc1 {L}\n s_waitcnt lgkmcnt(0)\n s_max_u32 s{sT+6+p}, s{sT+6+p}, s{sT+3}")
    A("s_setprio 0")
    sexpr(A, sT, [(sT+4,0,None,32)], 16)
    A(f"s_add_u32 s{sT+1}, s{sT}, 4\n s_atomic_umax s{sT+6}, s[{DBG}:{DBG+1}], s{sT} glc\n s_atomic_umax s{sT+7}, s[{DBG}:{DBG+1}], s{sT+1} glc\n s_waitcnt lgkmcnt(0)")
    A(f"v_mov_b32 v{R.E}, 1\n v_mov_b32 v{t}, {L_TK+8}\n s_mov_b64 exec, 1\n ds_add_rtn_u32 v{R.E}, v{t}, v{R.E}\n s_waitcnt lgkmcnt(0)\n v_readfirstlane_b32 s{sT}, v{R.E}\n s_mov_b64 exec, -1\n s_nop 2")
    A(f"s_cmp_lg_u32 s{sT}, 3\n s_cbranch_scc1 {Ls}")
    arrive(A)
    A(f"s_cmp_lg_u32 s{sU}, 0\n s_cbranch_scc1 {Ls}\n s_waitcnt lgkmcnt(0)")
    init_master(A, R.E, R.E+1)
    A(f"{Ls}:\n s_barrier")

def wprefetch(A, cfg, kind, ln, t):
    R = G
    if not cfg.wpf: return
    L = A.label("WP")
    A(f"s_cmp_lt_u32 s{sW}, 4\n s_cbranch_scc1 {L}")
    if kind == "o": A(f"s_cmp_eq_u32 s{sU}, 0\n s_cbranch_scc1 {L}")
    A(f"s_load_dwordx4 s[{sM}:{sM+3}], s[0:1], {A_WQ}\n s_load_dwordx4 s[{sM+4}:{sM+7}], s[0:1], {A_WV}")
    sexpr(A, sT, [(sJ,2,2,256*8192), (sJ,0,2,16*8192), (sW,0,2,4*8192), (sX,0,2,2048)])
    vexpr(A, R.E+5, t, [(ln,4,2,8192), (ln,0,4,128)], sT)
    sexpr(A, sT, [(sJ,0,4,4*8192), (sW,0,2,8192), (sX,0,2,2*MB)])
    vexpr(A, R.E+6, t, [(ln,0,None,128)], sT)
    A("s_waitcnt lgkmcnt(0)")
    A.srd(T0, sM+2, 8*MB); A.srd(T1, sM+4, 8*MB)
    for i in range(4):
        for sr in (T0, T1): A(f"s_mov_b32 s{sT}, {i*64*8192}\n buffer_load_dword v{R.E+7}, v{R.E+5}, s[{sr}:{sr+3}], s{sT} offen")
    A.srd(T0, sM, 8*MB); A.srd(T1, sM+6, 8*MB)
    for i in range(4):
        A(f"s_mov_b32 s{sT}, {i*64*8192}\n buffer_load_dword v{R.E+7}, v{R.E+5}, s[{T0}:{T0+3}], s{sT} offen")
        A(f"s_mov_b32 s{sT}, {i*MB//2}\n buffer_load_dword v{R.E+7}, v{R.E+6}, s[{T1}:{T1+3}], s{sT} offen")
    A(f"{L}:")

def prologue(A, cfg, kind):
    R = G
    ln, t = R.XF, R.XF+1
    A(f"v_and_b32 v{ln}, 63, v0\n v_mov_b32 v{R.zero}, 0\n s_and_b32 s{sNB}, s{sW}, 3\n s_lshr_b32 s{sKH}, s{sW}, 2")
    if kind == "k":
        sexpr(A, sU, [(sX,0,2,16), (sJ,0,None,1)])
        sexpr(A, sNF, [(sU,3,None,128), (sU,0,3,4)], FLG_KVX)
        sexpr(A, sT, [(sU,2,None,16384), (sU,0,2,2048), (sW,0,1,1024)])
        vexpr(A, R.a1, t, [(ln,0,None,16)], sT)
        for i in range(4): A(f"v_mov_b32 v{R.E+i}, -1")
        L = A.label("KI")
        A(f"s_cmp_lg_u32 s{sW}, 0\n s_cbranch_scc1 {L}")
        for p in range(2):
            A(f"s_mov_b32 s{sT}, {E3B + 8192*p}\n buffer_store_dwordx4 {v(R.E,4)}, v{R.a1}, {ws('s%d' % sT)} offen sc1\n buffer_store_dwordx4 {v(R.E,4)}, v{R.a1}, {ws('s%d' % sT)} offen offset:1024 sc1")
        A(f"{L}:")
    elif kind == "q":
        sexpr(A, sU, [(sX,0,2,8), (sJ,0,3,1)])
        sexpr(A, sNF, [(sU,3,None,128), (sU,0,3,4)], FLG_O)
    else:
        sexpr(A, sU, [(sX,0,2,1), (sJ,0,3,4)])
        sexpr(A, sNF, [(sU,2,None,128), (sU,0,2,4)], FLG_P)
    go_clear(A, R.zero, 0, sNF)
    if kind == "o": probe(A, cfg, ln, t, lambda: wprefetch(A, cfg, kind, ln, t))
    if kind == "q":
        L = A.label("GA")
        A("s_barrier"); wprefetch(A, cfg, kind, ln, t)
        A(f"s_cmp_lg_u32 s{sW}, 0\n s_cbranch_scc1 {L}\n s_waitcnt vmcnt(0)"); arrive(A); A(f"{L}:\n s_barrier")
    if kind != "k": wait_init(A, R.t, R.zero, cfg)
    if kind == "k":
        A(f"s_load_dwordx4 s[{sT+8}:{sT+11}], s[0:1], {A_WK}\n s_waitcnt lgkmcnt(0)\n s_bitcmp1_b32 s{sU}, 0\n s_cselect_b64 s[{sT+8}:{sT+9}], s[{sT+10}:{sT+11}], s[{sT+8}:{sT+9}]")
        rs = 8192; sexpr(A, sT, [(sKH,0,None,512*rs), (sU,1,None,256), (sNB,0,None,64)])
    elif kind == "q":
        A(f"s_load_dwordx2 s[{sT+8}:{sT+9}], s[0:1], {A_WQ}\n s_waitcnt lgkmcnt(0)")
        rs = 8192; sexpr(A, sT, [(sKH,0,None,512*rs), (sU,0,None,256), (sNB,0,None,64)])
    else:
        A(f"s_load_dwordx2 s[{sT+8}:{sT+9}], s[0:1], {A_WO}\n s_waitcnt lgkmcnt(0)")
        rs = 2048; sexpr(A, sT, [(sKH,0,None,512*rs), (sU,0,2,1024*rs), (sU,2,None,256), (sNB,0,None,64)])
    A.srd(T0, sT+8, 8*MB)
    wa = R.XF + 2
    vexpr(A, wa, t, [(ln,4,2,8*rs), (ln,0,4,4)], sT)
    A(f"s_mov_b32 s{sPLO}, 0x05040100\n s_mov_b32 s{sPHI}, 0x07060302")
    def issue(gp):
        for ks in (2*gp, 2*gp+1):
            for i in range(8):
                A(f"s_mov_b32 s{sT+8}, {(32*ks+i)*rs}\n buffer_load_dword v{R.W+8*ks+4*(i&1)+(i>>1)}, v{wa}, s[{T0}:{T0+3}], s{sT+8} offen")
    def fix(gp):
        for ks in (2*gp, 2*gp+1):
            for d in range(4):
                X, Y = R.W+8*ks+d, R.W+8*ks+4+d
                A(f"v_perm_b32 v{R.t}, v{Y}, v{X}, s{sPLO}\n v_perm_b32 v{Y}, v{Y}, v{X}, s{sPHI}\n v_mov_b32 v{X}, v{R.t}")
    if kind == "k":
        L = A.label("GA")
        A(f"s_barrier\n s_cmp_lg_u32 s{sW}, 0\n s_cbranch_scc1 {L}\n s_waitcnt vmcnt(0)"); arrive(A); A(f"{L}:")
    if kind == "o" and cfg.xpf:
        A(f"s_load_dwordx2 s[{sT+10}:{sT+11}], s[0:1], {A_X}")
        sexpr(A, sT, [(sU,0,None,8192), (sW,0,None,262144)])
        vexpr(A, R.E+1, t, [(ln,0,None,128)], sT)
        A("s_waitcnt lgkmcnt(0)")
        A.srd(T2, sT+10, 4*MB)
        A(f"buffer_load_dword v{R.E}, v{R.E+1}, s[{T2}:{T2+3}], 0 offen\n s_mov_b32 s{sT}, {2*MB}\n buffer_load_dword v{R.E}, v{R.E+1}, s[{T2}:{T2+3}], s{sT} offen")
    if kind != "k" and cfg.wdel: A(f"s_sleep {cfg.wdel}")
    for i in range(3): issue(i)
    if kind in "kq":
        A(f"s_load_dwordx2 s[{sT+10}:{sT+11}], s[0:1], {A_X}")
        u = R.XF + 3
        A(f"v_bfe_u32 v{t}, v{ln}, 1, 3\n v_lshrrev_b32 v{u}, 4, v{ln}\n v_xor_b32 v{u}, v{u}, v{t}")
        sexpr(A, sT, [(sKH,0,None,32768)])
        vexpr(A, R.xr, t, [(ln,3,1,1024), (ln,0,3,128), (u,0,None,16)], sT)
        A(f"v_xor_b32 v{R.xr+1}, 64, v{R.xr}")
        A(f"v_and_b32 v{t}, 7, v{ln}\n v_lshrrev_b32 v{u}, 4, v{ln}\n v_xor_b32 v{u}, v{u}, v{t}")
        A(f"s_lshl_b32 s{sM0}, s{sNB}, 13\n s_mov_b32 s{sSRC}, 0")
        sexpr(A, sT, [(sNB,0,None,256)])
        vexpr(A, R.dm, t, [(ln,3,None,2048), (u,0,None,16)], sT)
        A(f"v_xor_b32 v{R.dm+1}, 64, v{R.dm}\n s_waitcnt lgkmcnt(0)")
        A.srd(T1, sT+10, 4*MB)
    else:
        A(f"s_load_dwordx2 s[{sT+10}:{sT+11}], s[0:1], {D_OUT}")
        sexpr(A, sT, [(sKH,0,None,32768)])
        vexpr(A, R.xr, t, [(ln,0,None,16)], sT)
        A(f"v_mov_b32 v{R.xr+1}, 0\n s_lshl_b32 s{sM0}, s{sNB}, 13\n s_mov_b32 s{sSRC}, 0")
        sexpr(A, sT, [(sU,0,2,65536), (sNB,0,None,8192)], OBUF)
        vexpr(A, R.dm, t, [(ln,0,None,16)], sT)
        A("s_waitcnt lgkmcnt(0)")
        A.srd(T1, sT+10, 8*MB)
    sexpr(A, sT, [(sNB,0,None,4096)], L_EX)
    vexpr(A, R.exw, t, [(ln,0,None,16)], sT)
    A(f"v_xor_b32 v{R.exr}, 0x2000, v{R.exw}")
    vexpr(A, R.fa, t, [(ln,0,3,4)])
    return ln, t, issue, fix

def weights_finish(A, cfg, kind, issue, fix):
    for i in range(8):
        if i + 3 < 8:
            A("s_waitcnt vmcnt(32)"); fix(i); issue(i+3)
        else:
            A(f"s_waitcnt vmcnt({16*(7-i)})"); fix(i)
    if kind == "k":
        A("s_barrier"); wait_init(A, G.t, G.zero, cfg)
    else: mark(A, cfg, 1)

def dma(A, kind, i):
    R = G
    if kind in "kq":
        A(f"s_xor_b32 m0, s{sM0}, {1024*i}\n s_xor_b32 s{sT+2}, s{sSRC}, {(i&3)*16384 + (i>>2)*128}")
        A(f"buffer_load_dwordx4 v{R.dm+(i&1)}, s[{T1}:{T1+3}], s{sT+2} offen lds")
    else:
        A(f"s_add_u32 m0, s{sM0}, {1024*i}\n s_add_u32 s{sT+2}, s{sSRC}, {1024*i}")
        A(f"buffer_load_dwordx4 v{R.dm}, {ws('s%d' % (sT+2))} offen sc1 lds")

def tile_setup(A, kind):
    A(f"s_add_u32 s{sSRC}, s{sSRC}, {1 << (16 if kind in 'kq' else 18)}\n s_xor_b32 s{sM0}, s{sM0}, 0x10000")

def out_off(A, shift):
    A(f"s_sub_u32 s{sOUT}, s{sS}, 1\n s_lshl_b32 s{sOUT}, s{sOUT}, {shift}\n s_cmp_eq_u32 s{sS}, 0\n s_cselect_b32 s{sOUT}, {OOB}, s{sOUT}")

def xtouch(A, va, vd, ahead):
    return lambda: A(f"s_add_u32 s{sT+2}, s{sSRC}, {ahead*65536}\n buffer_load_dword v{vd}, v{va}, s[{T1}:{T1+3}], s{sT+2} offen")

def recv(lq):
    lq.op(f"ds_read_b128 {v(G.RX,4)}, v{G.exr}"); lq.op(f"ds_read_b128 {v(G.RX+4,4)}, v{G.exr} offset:1024", "rx")

def rd(lq, kind, nxf, i):
    R = G
    j = i % 32
    ks, tl = j & 15, 1 - (j >> 4)
    if kind in "kq": lq.op(f"ds_read_b128 {v(R.XF+4*(j%nxf),4)}, v{R.xr+2*tl+(ks&1)} offset:{(ks>>1)*4096}", j)
    else: lq.op(f"ds_read_b128 {v(R.XF+4*(j%nxf),4)}, v{R.xr+2*tl} offset:{(ks>>2)*8192+(ks&3)*1024}", j)

def loop_entry(A, lq, kind, nxf):
    for i in range(nxf-1): rd(lq, kind, nxf, i)

def mainloop(A, cfg, kind, lq, nxf, side, dstep, snd, nyoung, nearly=0):
    R = G
    q0 = list(lq.q)
    late = 32 - nxf
    stamp(A, cfg, 0)
    for i in range(32):
        ks, tl = i & 15, 1 - (i >> 4)
        lq.wait(i)
        for hf in range(2):
            acc = R.ACC + 8*tl + 4*hf
            A(f"v_mfma_f32_16x16x32_bf16 {v(acc,4)}, {v(R.W+8*ks+4*hf,4)}, {v(R.XF+4*(i%nxf),4)}, {'0' if ks == 0 else v(acc,4)}")
            if hf == 0: rd(lq, kind, nxf, i+nxf-1)
        if i == 0:
            stamp(A, cfg, 1)
            A(f"s_waitcnt vmcnt({nearly})\n s_barrier")
            stamp(A, cfg, 2)
        if cfg.pp and i % cfg.pp == 0: A(f"s_setprio {3 - (i // cfg.pp) % 4}")
        if i in dstep and 'd' not in cfg.abl: dma(A, kind, dstep.index(i))
        if i == snd:
            lq.op(f"ds_write_b128 v{R.exw}, {v(R.ACC+8,4)}"); lq.op(f"ds_write_b128 v{R.exw}, {v(R.ACC+12,4)} offset:1024", "snd")
        for f in side.get(i, []): f()
        if i == late:
            for k in ((0,1,2,3) if kind in "kq" else (0,2)): A(f"v_xor_b32 v{R.xr+k}, 0x10000, v{R.xr+k}")
            lq.wait("snd")
            stamp(A, cfg, 3)
            A(f"s_waitcnt vmcnt({nyoung})\n s_barrier")
            stamp(A, cfg, 4)
            recv(lq)
        if i == 31: lq.wait("rx")
    assert lq.q == q0[len(q0)-len(lq.q):], (lq.q, q0)
    lq.q = q0

def seq(A, lq, side):
    A("s_waitcnt lgkmcnt(0)\n s_nop 7"); lq.drain()
    for i in range(min(side), max(side)+1):
        for f in side.get(i, []): f()
        A("s_nop 3")

def adds(A, lo, hi):
    def f():
        for i in range(lo, hi): A(f"v_add_f32 v{G.RX+i}, v{G.ACC+i}, v{G.RX+i}")
    return f
def cvts(A, d=G.RX):
    for r in range(4): A(f"v_cvt_pk_bf16_f32 v{d+r}, v{G.RX+r}, v{G.RX+4+r}")
def merge(*ds):
    out = {}
    for d in ds:
        for k, x in d.items(): out.setdefault(k, []).extend(x)
    return out

def first_tile(A, kind):
    for i in range(8): dma(A, kind, i)
    A(f"s_mov_b32 s{sS}, 0")

def xdma(A, i):
    R = G; j = i & 7; h = i >> 3
    A(f"s_xor_b32 m0, s{sM0}, {1024*j + h*0x18000}\n s_add_u32 s{sT+2}, s{sSRC}, {(j&3)*16384 + (j>>2)*128 + h*(65536+1024)}")
    A(f"buffer_load_dwordx4 v{R.dm+(j&1)}, s[{T1}:{T1+3}], s{sT+2} offen lds")

def half(A, cfg, lq, nxf, cinit, side, frag=False):
    R = G
    def rd(i):
        if frag: lq.op(f"ds_read_b128 {v(R.XF+4*(i%nxf),4)}, v{R.xr} offset:{((i&15)>>2)*8192 + (i&3)*1024 + (i>>4)*4096}", i)
        else: lq.op(f"ds_read_b128 {v(R.XF+4*(i%nxf),4)}, v{R.xr+(i&1)} offset:{((i&15)>>1)*4096 + (i>>4)*2048}", i)
    def rc(tl):
        for hf in range(2): lq.op(f"ds_read_b128 {v(R.ACC+8*tl+4*hf,4)}, v{R.exw} offset:{2048*tl+1024*hf}")
    if cinit: rc(0)
    for i in range(nxf-1): rd(i)
    if cinit: rc(1)
    for i in range(32):
        ks, tl = i & 15, i >> 4
        lq.wait(i)
        for hf in range(2):
            acc = R.ACC + 8*tl + 4*hf
            A(f"v_mfma_f32_16x16x32_bf16 {v(acc,4)}, {v(R.W+8*ks+4*hf,4)}, {v(R.XF+4*(i%nxf),4)}, {'0' if (ks == 0 and not cinit) else v(acc,4)}")
            if hf == 0 and i+nxf-1 < 32: rd(i+nxf-1)
        for f in side.get(i, []): f()
    A(f"v_xor_b32 v{R.xr}, 0x10000, v{R.xr}\n v_xor_b32 v{R.xr+1}, 0x10000, v{R.xr+1}")

def send(lq, tl):
    for hf in range(2): lq.op(f"ds_write_b128 v{G.exw}, {v(G.ACC+8*tl+4*hf,4)} offset:{2048*tl+1024*hf}")
def pack(A, tl, dst):
    for r in range(4): A(f"v_cvt_pk_bf16_f32 v{dst+r}, v{G.ACC+8*tl+r}, v{G.ACC+8*tl+4+r}")
def y_first(A):
    L = A.label("YF")
    A(f"s_cmp_eq_u32 s{sKH}, 0\n s_cbranch_scc1 {L}\n s_sub_u32 s{sSRC}, s{sSRC}, 65536\n s_xor_b32 s{sM0}, s{sM0}, 0x10000")
    for i in range(8, 16): xdma(A, i)
    A(f"s_add_u32 s{sSRC}, s{sSRC}, 65536\n s_xor_b32 s{sM0}, s{sM0}, 0x10000\n {L}:\n s_mov_b32 s{sS}, 0")
def y_next(A): A(f"s_add_u32 s{sSRC}, s{sSRC}, 65536\n s_xor_b32 s{sM0}, s{sM0}, 0x10000")

def emit_kv(A, cfg):
    R = G; lq = LQ(A)
    A("L_kv:")
    ln, t, issue, fix = prologue(A, cfg, "k")
    sexpr(A, sT, [(sU,0,None,8192), (sNB,0,None,1024)], KVX)
    vexpr(A, R.st, t, [(ln,0,None,16)], sT)
    sexpr(A, sT, [(sJ,0,4,4096), (sNB,0,None,1024)]); vexpr(A, R.a2, t, [(ln,0,3,128)], sT)
    sexpr(A, sT, [(sU,2,None,16384), (sU,0,2,2048), (sNB,0,None,512)]); vexpr(A, R.a3, t, [(ln,0,None,8)], sT)
    y_first(A)
    weights_finish(A, cfg, "k", issue, fix)
    A(f"s_cmp_eq_u32 s{sKH}, 0\n s_cbranch_scc1 L_kv_x")
    A("L_kv_y:")
    mark(A, cfg, 3, 4); mark(A, cfg, 4, 36); stamp(A, cfg, 0)
    flag_set(A, -1, 4)
    for i in range(cfg.burst): xdma(A, i)
    stamp(A, cfg, 1)
    side = {2*(i-cfg.burst): [lambda i=i: xdma(A, i)] for i in range(cfg.burst, 16)}
    half(A, cfg, lq, 8, False, merge(side, {19: [lambda: send(lq, 0)]}))
    stamp(A, cfg, 2)
    y_next(A); A("s_nop 3"); send(lq, 1); A(f"v_xor_b32 v{R.exw}, 0x4000, v{R.exw}")
    A("s_waitcnt vmcnt(0) lgkmcnt(0)"); stamp(A, cfg, 3); A("s_barrier"); lq.drain()
    stamp(A, cfg, 4); stamp(A, cfg, 6); flush(A, cfg, R.E+12)
    A(f"s_add_u32 s{sS}, s{sS}, 1\n s_cmp_lt_u32 s{sS}, 64\n s_cbranch_scc1 L_kv_y")
    flag_set(A, -1, 4)
    A("s_barrier")
    flag_set(A, 0, 4)
    A("s_branch L_kv_end")
    A("L_kv_x:\n s_barrier")
    mark(A, cfg, 3, 4); mark(A, cfg, 4, 36); stamp(A, cfg, 0)
    def setup():
        e3_off(A, sE3, sS); A(f"s_lshl_b32 s{sOUT}, s{sS}, 19\n s_add_u32 s{sKX}, s{sOUT}, 4096\n s_add_u32 s{sKM}, s{sS}, {2+cfg.xa}\n s_lshl_b32 s{sKM}, s{sKM}, 16")
    half(A, cfg, lq, 8, True, {0: [setup], 19: [lambda: pack(A, 0, R.E+4)]})
    stamp(A, cfg, 1)
    A(f"v_xor_b32 v{R.exw}, 0x4000, v{R.exw}\n s_nop 4"); pack(A, 1, R.E+8)
    if cfg.xsl: A(f"s_sleep {cfg.xsl}")
    A(f"buffer_load_dword v{R.t}, v{R.a2}, s[{T1}:{T1+3}], s{sKM} offen")
    A(f"buffer_store_dwordx4 {v(R.E+4,4)}, v{R.st}, {ws('s%d' % sOUT)} offen sc1\n buffer_store_dwordx4 {v(R.E+8,4)}, v{R.st}, {ws('s%d' % sKX)} offen sc1")
    A(f"buffer_store_dwordx2 {v(R.E,2)}, v{R.a3}, {ws('s%d' % sE3)} offen sc1")
    stamp(A, cfg, 2)
    A("s_waitcnt vmcnt(0)")
    stamp(A, cfg, 3); stamp(A, cfg, 4); stamp(A, cfg, 6); flush(A, cfg, R.E+12)
    A(f"s_add_u32 s{sS}, s{sS}, 1\n s_cmp_lt_u32 s{sS}, 64\n s_cbranch_scc1 L_kv_x")
    A("s_barrier\n L_kv_end:")

def emit_q(A, cfg):
    R = G; lq = LQ(A)
    L_Q = L_EX + 16384; L_K = L_Q + 8192
    A("L_q:")
    ln, t, issue, fix = prologue(A, cfg, "q")
    VX = 72; KM = 88; VM = 96; SEL = 100; ONES = 108; PM = 112; VMT = 116; QP = 56
    MK = [8, 10, 16, 18, 64, 66, 70, 72]
    qw, qr, kr = R.exr, R.xr+2, R.xr+3
    sexpr(A, sT, [(sU,0,None,8192), (sW,0,1,4096), (sW,1,1,2048)], OBUF)
    vexpr(A, R.st, t, [(ln,0,None,16)], sT)
    sexpr(A, sT, [(sU,0,None,16384), (sW,1,1,2048)], KVX + 8192)
    sexpr(A, sT+1, [(sU,0,None,16384), (sNB,0,None,2048)], KVX)
    A(f"s_cmp_eq_u32 s{sKH}, 0\n s_cselect_b32 s{sT}, s{sT}, s{sT+1}")
    vexpr(A, R.a1, t, [(ln,0,None,16)], sT)
    sexpr(A, sT, [(sU,0,None,4096)], KVM)
    vexpr(A, R.a2, t, [(ln,1,1,512), (ln,4,2,128), (ln,2,2,32), (ln,0,1,16)], sT)
    sexpr(A, sT, [(sNB,0,None,1024)], L_Q); vexpr(A, qw, t, [(ln,0,None,16)], sT)
    sexpr(A, sT, [(sW,0,1,4096)], L_Q); vexpr(A, qr, t, [(ln,0,None,16)], sT)
    vexpr(A, kr, t, [(ln,0,None,16)], None, L_K)
    sexpr(A, sFL, [(sU,0,None,128)], FLG_KVM)
    sexpr(A, sT, [(sJ,0,3,8192), (sNB,0,None,2048)]); vexpr(A, R.a3, t, [(ln,0,4,128)], sT)
    u, w_ = R.XF+3, R.XF+4
    sexpr(A, sT, [(sW,0,1,16)])
    vexpr(A, R.a4, t, [(ln,0,4,1), (ln,4,2,-4)], sT)
    vexpr(A, u, t, [(ln,0,4,1), (ln,4,2,-4)])
    A(f"v_mov_b32 v{w_}, 0x3f80\n v_mov_b32 v{t}, 0x3f800000")
    for d in range(4): A(f"v_cmp_eq_u32 vcc, {d}, v{u}\n s_nop 1\n v_cndmask_b32 v{SEL+d}, 0, v{w_}, vcc\n v_cndmask_b32 v{SEL+4+d}, 0, v{t}, vcc")
    for i in range(4): A(f"v_mov_b32 v{ONES+i}, 0x3f803f80")
    for i in range(12): A(f"v_mov_b32 v{PM+i}, 0")
    A(f"s_mov_b32 s{sC}, {hex(CEXP)}\n s_mov_b32 s{sPROG}, 0")
    y_first(A)
    weights_finish(A, cfg, "q", issue, fix)
    for k in range(8): A(f"v_cmp_gt_i32 s[{MK[k]}:{MK[k]+1}], {16*(k>>2) + (k&3)}, v{R.a4}")
    A(f"v_mov_b32 v{R.a4}, {hex(f2u(-1e30))}\n s_barrier\n s_cmp_eq_u32 s{sKH}, 0\n s_cbranch_scc1 L_q_x0")
    sexpr(A, sKM, [(sNB,0,None,2048)], L_K)
    A("L_q_y:")
    mark(A, cfg, 3, 4); mark(A, cfg, 4, 36); stamp(A, cfg, 0)
    def kdma():
        A(f"s_sub_u32 s{sKX}, s{sS}, 1\n s_lshl_b32 s{sKX}, s{sKX}, 19\n s_cmp_eq_u32 s{sS}, 0\n s_cselect_b32 s{sKX}, {OOB-4096}, s{sKX}\n s_mov_b32 m0, s{sKM}\n s_nop 0")
        A(f"buffer_load_dwordx4 v{R.a1}, {ws('s%d' % sKX)} offen sc1 lds\n buffer_load_dwordx4 v{R.a1}, {ws('s%d' % sKX)} offen offset:1024 sc1 lds")
    kdma()
    for i in range(cfg.burstq): xdma(A, i)
    stamp(A, cfg, 1)
    def mid():
        A(f"s_waitcnt vmcnt({cfg.burstq})\n s_barrier")
        stamp(A, cfg, 2)
        flag_set(A, -1, 4)
    side = {cfg.ymid+1+2*(i-cfg.burstq): [lambda i=i: xdma(A, i)] for i in range(cfg.burstq, 16)}
    half(A, cfg, lq, 8, False, merge(side, {cfg.ymid: [mid], 19: [lambda: send(lq, 0)]}))
    y_next(A); A("s_nop 3"); send(lq, 1)
    A("s_waitcnt vmcnt(0) lgkmcnt(0)"); stamp(A, cfg, 3); A("s_barrier"); lq.drain()
    stamp(A, cfg, 4); stamp(A, cfg, 6); flush(A, cfg, R.E)
    A(f"s_add_u32 s{sS}, s{sS}, 1\n s_cmp_lt_u32 s{sS}, 64\n s_cbranch_scc1 L_q_y")
    kdma()
    A("s_waitcnt vmcnt(0)\n s_barrier")
    flag_set(A, -1, 4)
    A("s_barrier")
    flag_set(A, 0, 4)
    A("s_branch L_done")
    A(f"L_q_x0:\n s_barrier\n s_mov_b32 s{sT}, 1")
    prog_wait(A, 4, sFL, sPROG, sT)
    A("L_q_x:\n s_barrier")
    mark(A, cfg, 3, 4); mark(A, cfg, 4, 36); stamp(A, cfg, 0)
    ml = [f"buffer_load_dwordx4 {v(KM,4)}, v{R.a2}, {ws('s%d' % sKM)} offen sc1", f"buffer_load_dwordx4 {v(KM+4,4)}, v{R.a2}, {ws('s%d' % sKM)} offen offset:1024 sc1",
          f"buffer_load_dwordx4 {v(VM,4)}, v{R.a2}, {ws('s%d' % (sT+9))} offen offset:2048 sc1"]
    def mset():
        A(f"s_lshl_b32 s{sKM}, s{sS}, 17"); sexpr(A, sT+9, [(sW,1,1,1024), (sKM,0,None,1)])
    def setup():
        A(f"s_lshl_b32 s{sOUT}, s{sS}, 18\n s_lshl_b32 s{sKX}, s{sS}, 19\n s_add_u32 s{sT+8}, s{sKX}, 4096\n s_bitcmp1_b32 s{sW}, 0\n s_cselect_b32 s{sT+8}, s{sT+8}, {OOB-4096}")
        mset()
        A(f"s_cmp_gt_u32 s{sPROG}, s{sS}\n s_cselect_b32 s{sEARLY}, 1, 0\n s_cselect_b32 s{sKM}, s{sKM}, {OOB-4096}\n s_cselect_b32 s{sT+9}, s{sT+9}, {OOB-4096}")
        A(f"s_add_u32 s{sT+10}, s{sS}, {2+cfg.xa}\n s_lshl_b32 s{sT+10}, s{sT+10}, 16")
    vl = [f"buffer_load_dwordx4 {v(VX+8*f+4*k,4)}, v{R.a1}, {ws('s%d' % (sT+8 if k else sKX))} offen offset:{1024*f} sc1" for f in range(2) for k in range(2)]
    lds_ = vl + ml + [f"buffer_load_dword v{QP+8}, v{R.a3}, s[{T1}:{T1+3}], s{sT+10} offen", f"buffer_load_dword v{R.t}, v{R.fa}, {ws('s%d' % sFL)} offen sc1"]
    side = {1+i: [lambda x=x: A(x)] for i, x in enumerate(lds_)}
    def q0(): pack(A, 0, QP); lq.op(f"ds_write_b128 v{qw}, {v(QP,4)}")
    half(A, cfg, lq, 4, True, merge(side, {0: [setup], 19: [q0]}))
    stamp(A, cfg, 1)
    A("s_nop 5"); pack(A, 1, QP+4); A(f"ds_write_b128 v{qw}, {v(QP+4,4)} offset:4096")
    A(f"s_waitcnt vmcnt({len(lds_)}) lgkmcnt(0)\n s_barrier"); lq.drain()
    stamp(A, cfg, 2)
    def M(D, a, b, c): A(f"v_mfma_f32_16x16x32_bf16 {v(D,4)}, {v(a,4)}, {v(b,4)}, {c if isinstance(c, str) else v(c,4)}")
    Q = 16; KB = 32; S0 = 48; T = 64 - 8
    for f in range(4):
        lq.op(f"ds_read_b128 {v(Q+4*f,4)}, v{qr} offset:{1024*f}")
        if f < 2:
            for k in range(2): lq.op(f"ds_read_b128 {v(KB+8*f+4*k,4)}, v{kr} offset:{4096*k+1024*f}", ("k", f))
    TT = 64
    def vt(f, hf):
        for k in range(2): M(TT+4*k, VX+8*f+4*k, SEL+4*hf, "0")
    def vc(dst):
        for k in range(4): A(f"v_cvt_pk_bf16_f32 v{dst+k}, v{TT+2*k}, v{TT+2*k+1}")
    VT = [124, VX, VX+4, VX+8]
    for f in range(4):
        lq.wait(("k", f))
        M(S0, KB+8*(f&1), Q+4*f, "0" if f == 0 else S0); M(S0+4, KB+8*(f&1)+4, Q+4*f, "0" if f == 0 else S0+4)
        if f < 2:
            for k in range(2): lq.op(f"ds_read_b128 {v(KB+8*f+4*k,4)}, v{kr} offset:{4096*k+1024*(f+2)}", ("k", f+2))
    A("s_waitcnt vmcnt(0)")
    prog_min(A, 4, sPROG)
    A(f"s_cmp_lg_u32 s{sEARLY}, 0\n s_cbranch_scc1 L_q_e\n s_add_u32 s{sT}, s{sS}, 1")
    prog_wait(A, 4, sFL, sPROG, sT)
    mset()
    for x in ml: A(x)
    A("s_waitcnt vmcnt(0)\n L_q_e:")
    stamp(A, cfg, 5)
    for f in range(4): M(S0+8+4*(f&1), KM+4*(f>>1), Q+4*f, "0" if f < 2 else S0+8+4*(f&1))
    T2_ = KB + 8
    def vt(f, hf, D):
        for k in range(2): M(D+4*k, VX+8*f+4*k, SEL+4*hf, "0")
    def vc(dst, D):
        for k in range(4): A(f"v_cvt_pk_bf16_f32 v{dst+k}, v{D+2*k}, v{D+2*k+1}")
    for hf in range(2): M(TT+4*hf, VM, SEL+4*hf, "0")
    vt(0, 0, T2_)
    for k in range(8): A(f"v_cndmask_b32 v{S0+k}, v{S0+k}, v{R.a4}, s[{MK[k]}:{MK[k]+1}]")
    m, mt, m2, m3 = KB, KB+1, KB+2, KB+3
    def mc(f, hf): A(f"v_cvt_pk_bf16_f32 v{VMT+2*(2*f+hf)}, v{TT+4*hf+2*f}, v{TT+4*hf+2*f+1}")
    mc(0,0); mc(0,1); mc(1,0); mc(1,1)
    vt(0, 1, TT)
    A(f"v_add_f32 v{S0+8}, v{S0+8}, v{S0+14}\n v_add_f32 v{S0+9}, v{S0+9}, v{S0+15}")
    A(f"v_max3_f32 v{m}, v{S0}, v{S0+1}, v{S0+2}")
    for i in range(3): A(f"v_max3_f32 v{m}, v{m}, v{S0+3+2*i}, v{S0+4+2*i}")
    A(f"v_max_f32 v{mt}, v{m}, v{S0+9}\n v_max_f32 v{m}, v{m}, v{S0+9}")
    vc(VT[0], T2_); vt(1, 0, T2_)
    A(f"v_permlane16_swap_b32 v{m}, v{mt}\n v_max_f32 v{m2}, v{m}, v{mt}\n v_max_f32 v{m3}, v{m}, v{mt}")
    vc(VT[1], TT); vt(1, 1, TT)
    A(f"v_permlane32_swap_b32 v{m2}, v{m3}\n v_max_f32 v{m}, v{m2}, v{m3}\n v_mul_f32 v{m}, s{sC}, v{m}")
    for i in range(10): A(f"v_fma_f32 v{S0+i}, v{S0+i}, s{sC}, -v{m}")
    for i in range(10): A(f"v_exp_f32 v{S0+i}, v{S0+i}")
    vc(VT[2], T2_); vc(VT[3], TT)
    P = KB+4; Lr = KB+8; O = Q
    for i in range(4): A(f"v_cvt_pk_bf16_f32 v{P+i}, v{S0+2*i}, v{S0+2*i+1}")
    A(f"v_cvt_pk_bf16_f32 v{PM+2}, v{S0+8}, v{S0+9}\n s_nop 0")
    stamp(A, cfg, 7)
    M(Lr, ONES, P, "0"); M(Lr, ONES, PM, Lr)
    for j in range(4): M(O+4*j, VT[j], P, "0"); M(O+4*j, VMT+2*j-2, PM, O+4*j)
    A(f"v_rcp_f32 v{m}, v{Lr}\n s_nop 0")
    for f in range(2):
        for i in range(8): A(f"v_mul_f32 v{O+8*f+i}, v{O+8*f+i}, v{m}")
        for r in range(4): A(f"v_cvt_pk_bf16_f32 v{S0+8+4*f+r}, v{O+8*f+r}, v{O+8*f+4+r}")
        A(f"buffer_store_dwordx4 {v(S0+8+4*f,4)}, v{R.st}, {ws('s%d' % sOUT)} offen offset:{1024*f} sc1")
    stamp(A, cfg, 3); stamp(A, cfg, 4); stamp(A, cfg, 6); flush(A, cfg, TT)
    A(f"s_add_u32 s{sS}, s{sS}, 1\n s_cmp_lt_u32 s{sS}, 64\n s_cbranch_scc1 L_q_x")
    A("s_waitcnt vmcnt(0)\n s_barrier\n s_branch L_done")

def emit_o(A, cfg):
    R = G; lq = LQ(A)
    A("L_o:")
    ln, t, issue, fix = prologue(A, cfg, "o")
    F = R.E
    sexpr(A, sT, [(sU,2,None,65536), (sNB,0,None,16384), (sU,0,2,4096)], PART)
    vexpr(A, R.st, t, [(ln,0,None,16)], sT)
    sexpr(A, sT, [(sU,0,None,16384), (sW,0,1,2048)], PART)
    vexpr(A, R.a1, t, [(ln,0,None,16)], sT)
    sexpr(A, sT, [(sW,0,1,16*4096), (sU,0,None,64)])
    vexpr(A, R.a2, t, [(ln,0,4,4096), (ln,4,2,16)], sT)
    sexpr(A, sT, [(sU,0,2,65536), (sU,2,None,8192), (sNB,0,None,2048)], OBUF); vexpr(A, R.a3, t, [(ln,0,4,128)], sT)
    sexpr(A, sFL, [(sU,0,2,128)], FLG_O); sexpr(A, sFL2, [(sU,2,None,128)], FLG_P)
    A(f"s_mov_b32 s{sPROG}, 0\n s_mov_b32 s{sS}, 0")
    weights_finish(A, cfg, "o", issue, fix)
    A(f"s_cmp_eq_u32 s{sKH}, 0\n s_cbranch_scc1 L_o_x0")
    def odma(i):
        h = 1 - (i >> 3); j = i & 7
        if j % 4 == 0: A(f"s_xor_b32 m0, s{sM0}, {1024*j + h*0x8000}\n s_add_u32 s{sT+2}, s{sSRC}, {1024*j + h*0x8000}")
        A(f"buffer_load_dwordx4 v{R.dm}, {ws('s%d' % (sT+2))} offen offset:{1024*(j&3)} sc1 lds")
    A("L_o_y:")
    mark(A, cfg, 3, 4); mark(A, cfg, 4, 36); stamp(A, cfg, 0)
    A(f"s_add_u32 s{sT}, s{sS}, 1")
    prog_wait(A, 8, sFL, sPROG, sT)
    stamp(A, cfg, 1)
    if cfg.otouch: A(f"buffer_load_dword v{R.t}, v{R.a3}, {ws('s%d' % sSRC)} offen sc1")
    for i in range(cfg.bursto): odma(i)
    A(f"s_waitcnt vmcnt({cfg.bursto-8})\n s_barrier")
    stamp(A, cfg, 2)
    side = {2*(i-cfg.bursto): [lambda i=i: odma(i)] for i in range(cfg.bursto, 16)}
    half(A, cfg, lq, 8, False, merge(side, {19: [lambda: send(lq, 0)]}), True)
    A(f"s_add_u32 s{sSRC}, s{sSRC}, 262144\n s_xor_b32 s{sM0}, s{sM0}, 0x10000\n s_nop 3"); send(lq, 1)
    A("s_waitcnt vmcnt(0) lgkmcnt(0)"); stamp(A, cfg, 3); A("s_barrier"); lq.drain()
    flag_set(A, 0, 4)
    stamp(A, cfg, 4); stamp(A, cfg, 6); flush(A, cfg, R.E)
    A(f"s_add_u32 s{sS}, s{sS}, 1\n s_cmp_lt_u32 s{sS}, 64\n s_cbranch_scc1 L_o_y")
    A("s_barrier")
    flag_set(A, 0, 4)
    A(f"s_mov_b32 s{sPROG}, 0\n s_branch L_o_end")
    def fin_wait():
        A(f"s_add_u32 s{sT}, s{sFIN}, 1")
        prog_wait(A, 4, sFL2, sPROG, sT)
        A(f"s_lshl_b32 s{sKX}, s{sFIN}, 19\n s_lshl_b32 s{sKM}, s{sFIN}, 17\n s_cmp_lt_i32 s{sFIN}, 0\n s_cselect_b32 s{sKX}, {OOB-65536}, s{sKX}\n s_cselect_b32 s{sKM}, {OOB-65536}, s{sKM}")
    def fin_load(p, tup, dst):
        A(f"s_add_u32 s{sT+5}, s{sKX}, {4096*p}\n buffer_load_dwordx4 {v(dst,4)}, v{R.a1}, {ws('s%d' % (sT+5))} offen offset:{1024*tup} sc1")
    def fin_store():
        for (a, b) in ((0, 8), (16, 24), (0, 16)):
            for i in range(8): A(f"v_add_f32 v{F+a+i}, v{F+a+i}, v{F+b+i}")
        for r in range(4): A(f"v_cvt_pk_bf16_f32 v{F+32+r}, v{F+r}, v{F+4+r}")
        A(f"buffer_store_dwordx4 {v(F+32,4)}, v{R.a2}, s[{T1}:{T1+3}], s{sKM} offen")
    def pst():
        for i in range(4): A(f"buffer_store_dwordx4 {v(R.ACC+4*i,4)}, v{R.st}, {ws('s%d' % sOUT)} offen offset:{1024*i} sc1")
    A("L_o_x0:\n s_barrier\n L_o_x:\n s_barrier")
    mark(A, cfg, 3, 4); mark(A, cfg, 4, 36); stamp(A, cfg, 0)
    half(A, cfg, lq, 8, True, {}, True)
    stamp(A, cfg, 1)
    A(f"s_lshl_b32 s{sOUT}, s{sS}, 19\n s_cmp_eq_u32 s{sS}, 63\n s_cbranch_scc1 L_o_last\n s_barrier")
    stamp(A, cfg, 2)
    A(f"s_cmp_ge_u32 s{sW}, 2\n s_cbranch_scc1 L_o_nf\n s_sub_u32 s{sFIN}, s{sS}, 2")
    fin_wait()
    for p in range(4): fin_load(p, 0, F+8*p); fin_load(p, 1, F+8*p+4)
    prog_load(A, sFL2)
    pst()
    A("s_waitcnt vmcnt(4)")
    prog_min(A, 4, sPROG)
    fin_store()
    A("s_waitcnt vmcnt(1)\n s_branch L_o_n2\n L_o_nf:")
    if cfg.osl: A(f"s_sleep {cfg.osl}")
    pst()
    A("s_waitcnt vmcnt(0)\n L_o_n2:")
    stamp(A, cfg, 3); stamp(A, cfg, 4); stamp(A, cfg, 6); flush(A, cfg, R.RX)
    A(f"s_add_u32 s{sS}, s{sS}, 1\n s_branch L_o_x")
    A("L_o_last:\n s_nop 2"); pst()
    A(f"s_waitcnt vmcnt(0)\n s_barrier\n L_o_end:\n s_cmp_ge_u32 s{sW}, 6\n s_cbranch_scc1 L_done\n s_lshr_b32 s{sFIN}, s{sW}, 1\n s_sub_u32 s{sFIN}, 63, s{sFIN}")
    fin_wait()
    for p in range(4): fin_load(p, 0, F+8*p); fin_load(p, 1, F+8*p+4)
    A("s_waitcnt vmcnt(0)")
    fin_store()
    A("s_branch L_done")
```

```python
from common import *
import itertools
sRING = 30; sE3 = 31; sRINGP = 49; sPFB = 50; sNF = 51; sVX = 52; sKVM = 59; sW4 = 60; sG = 61; sJJ = 62; sD = 68; sFL = 70; sHA = 71
L_FB = 0
L_RA = 512
RAS = 3264
L_RB = L_RA + 4*RAS
L_KX = L_RB + 4*2048

def ring_off(A, dst, add):
    A(f"s_add_u32 s{dst}, s{sS}, {add}\n s_and_b32 s{dst}, s{dst}, 3\n s_lshl_b32 s{dst}, s{dst}, 18\n s_add_u32 s{dst}, s{dst}, {RING}")
def retry(A, cfg, k=1):
    spin_dn(A)
    if cfg.dev: A(f"s_add_u32 s{sRET}, s{sRET}, {k}")

def states():
    order = []
    for r in range(4):
        st = tuple((r + i) & 3 for i in range(4))
        while len(st) >= 2:
            order.append(st); st = st[1:]
    for n in (3, 2):
        for sub in itertools.combinations(range(4), n):
            for r in range(n):
                st = sub[r:] + sub[:r]
                if st not in order: order.append(st)
    return order
def nm(st): return "".join(map(str, st))

def ring_lines(A, dst, t, u, idx):
    sexpr(A, sT, [(sX,0,None,16384), (sJ,0,None,512)])
    sexpr(A, sT+1, [(sHA,0,None,6144), (sJ,0,2,1024)], 65536 - 32*16)
    sexpr(A, sT+2, [(sHA,0,None,6144), (sJ,0,2,512)], 65536 + 4096 - 96*16)
    A(f"v_mov_b32 v{t}, s{sT}\n v_mov_b32 v{u}, s{sT+1}\n v_cmp_le_u32 vcc, 32, v{idx}\n s_nop 1\n v_cndmask_b32 v{t}, v{t}, v{u}, vcc")
    A(f"v_mov_b32 v{u}, s{sT+2}\n v_cmp_le_u32 vcc, 0x60, v{idx}\n s_nop 1\n v_cndmask_b32 v{t}, v{t}, v{u}, vcc\n v_lshl_add_u32 v{dst}, v{idx}, 4, v{t}")

class RA:
    rvr = 0; idx = 1; e1ld = 2; e1st = 3; e3ld = 4; e3st = 5; raw = 6; rbr = 7; kv = 8; hk = 9; zero = 10; t = 11; T = 12; pubv = 13; vst = 14; stg = 15
    SEL = 16; rawv = 20; ACC = 24; MEM = 48; W = 64
STG = [RA.ACC+4*i for i in range(6)] + [RA.MEM+8, RA.MEM+12]

def stage_setup(A):
    A(f"s_add_u32 s{sD}, s{sS}, 1\n s_lshl_b32 s{sD}, s{sD}, 19\n s_add_u32 s{sD+1}, s{sD}, {524288+8192}")
def stage_load(A):
    for i in range(8): A(f"buffer_load_dwordx4 {v(STG[i],4)}, v{RA.kv}, {ws('s%d' % (sD+(i>>2)))} offen offset:{1024*(i&3)} sc1")
def stage_write(A):
    for i in range(8): A(f"ds_write_b128 v{RA.stg}, {v(STG[i],4)} offset:{1024*i}")

def emit_A_prologue(A, cfg):
    R = RA
    ln, t, u, w_, wa = R.ACC, R.ACC+1, R.ACC+2, R.ACC+3, R.ACC+4
    A(f"v_and_b32 v{ln}, 63, v0\n v_mov_b32 v{R.zero}, 0")
    A(f"s_load_dwordx4 s[{sT+8}:{sT+11}], s[0:1], {A_WQ}\n s_load_dwordx2 s[{sT+12}:{sT+13}], s[0:1], {A_WV}")
    sexpr(A, sT, [(sW4,0,None,256*8192), (sX,0,None,2048), (sJ,0,None,64)])
    vexpr(A, wa, t, [(ln,5,1,16*8192), (ln,4,1,8192), (ln,0,4,4)], sT)
    A(f"s_mov_b32 s{sPLO}, 0x05040100\n s_mov_b32 s{sPHI}, 0x07060302\n s_waitcnt lgkmcnt(0)")
    A.srd(T0, sT+8, 8*MB); A.srd(T1, sT+10, 8*MB); A.srd(T2, sT+12, 8*MB)
    def wreg(c, mat, hf, t8): return R.W + ((c*6) + mat*2 + hf)*8 + t8
    groups = [(c, mat) for c in range(4) for mat in (1, 2)] + [(c, 0) for c in range(4)]
    def issue(c, mat):
        sr = [T0, T1, T2][mat]
        for t8 in range(8):
            for b in range(2):
                d = 64*c + 32*(t8 >> 2) + 8*((t8 >> 1) & 1) + 2*(t8 & 1) + 4*b
                A(f"s_mov_b32 s{sT+8}, {d*8192}\n buffer_load_dword v{wreg(c,mat,b,t8)}, v{wa}, s[{sr}:{sr+3}], s{sT+8} offen")
    def fix(c, mat):
        for t8 in range(8):
            X, Y = wreg(c,mat,0,t8), wreg(c,mat,1,t8)
            A(f"v_perm_b32 v{R.t}, v{Y}, v{X}, s{sPLO}\n v_perm_b32 v{Y}, v{Y}, v{X}, s{sPHI}\n v_mov_b32 v{X}, v{R.t}")
    A("s_barrier")
    for i in range(3): issue(*groups[i])
    ring_lines(A, R.hk, t, u, 0)
    def e3addr(dst, vp, vL):
        A(f"v_lshlrev_b32 v{vL}, 7, v{vL}\n v_lshl_add_u32 v{vL}, v{vp}, 12, v{vL}\n v_and_b32 v{vL}, 0x3fff, v{vL}\n v_lshl_add_u32 v{vL}, v{vp}, 14, v{vL}")
        A(f"v_lshrrev_b32 v{vp}, 13, v{vL}\n v_lshlrev_b32 v{vp}, 14, v{vp}\n v_and_b32 v{vL}, 0x1fff, v{vL}\n v_add_u32 v{dst}, v{vp}, v{vL}")
    sexpr(A, sT, [(sX,0,None,2), (sG,0,None,1)]); sexpr(A, sT+1, [(sJJ,0,None,8), (sW4,0,None,2)])
    A(f"v_mov_b32 v{t}, s{sT}"); vexpr(A, u, w_, [(ln,5,1,1)], sT+1)
    e3addr(R.e3st, t, u)
    A(f"v_and_b32 v{t}, 31, v{ln}\n v_lshl_add_u32 v{R.e3st}, v{t}, 2, v{R.e3st}")
    sexpr(A, sT+1, [(sJ,0,None,4), (sW4,0,None,1)])
    A(f"v_lshrrev_b32 v{t}, 3, v{ln}\n v_mov_b32 v{u}, s{sT+1}")
    e3addr(R.e3ld, t, u)
    A(f"v_and_b32 v{t}, 7, v{ln}\n v_lshl_add_u32 v{R.e3ld}, v{t}, 4, v{R.e3ld}")
    sexpr(A, sT, [(sX,0,None,16384), (sJ,0,None,512), (sW4,0,None,128)])
    vexpr(A, R.e1st, t, [(ln,0,3,16), (ln,4,2,4)], sT)
    sexpr(A, sT, [(sX,0,None,16384), (sW4,0,None,4096)])
    vexpr(A, R.e1ld, t, [(ln,4,2,256), (ln,1,1,128), (ln,2,2,32), (ln,0,1,16)], sT)
    sexpr(A, sT, [(sHA,0,None,6144), (sJ,0,2,512), (sW4,0,None,256)], 65536 + 4096)
    vexpr(A, R.vst, t, [(ln,0,None,4)], sT)
    sexpr(A, sT, [(sHA,0,None,4096), (sJ,0,2,512), (sW4,0,None,256)], 2048)
    A(f"s_cmp_ge_u32 s{sW4}, 2\n s_cselect_b32 s{sT}, {OOB-512}, s{sT}")
    vexpr(A, R.pubv, t, [(ln,1,1,128), (ln,4,2,32), (ln,2,1,16), (ln,0,1,8), (ln,3,1,4)], sT)
    A(f"v_and_b32 v{t}, 2, v{ln}\n v_cmp_eq_u32 vcc, 0, v{t}\n v_mov_b32 v{R.idx}, 0xeeee\n v_mov_b32 v{u}, 0x4444\n v_cndmask_b32 v{R.idx}, v{R.idx}, v{u}, vcc")
    A(f"v_and_b32 v{t}, 1, v{ln}\n v_lshlrev_b32 v{t}, 4, v{t}\n v_mov_b32 v{u}, 0x3f80\n v_lshlrev_b32 v{u}, v{t}, v{u}\n v_cndmask_b32 v{u}, 0, v{u}, vcc\n v_bfe_u32 v{t}, v{ln}, 2, 2")
    for i in range(4): A(f"v_cmp_eq_u32 vcc, {i}, v{t}\n s_nop 1\n v_cndmask_b32 v{R.SEL+i}, 0, v{u}, vcc")
    sexpr(A, sT, [(sW4,0,None,RAS)], L_RA)
    vexpr(A, R.raw, t, [(ln,2,2,544), (ln,4,2,128), (ln,0,2,8)], sT)
    vexpr(A, R.rawv, t, [(ln,3,1,544), (ln,4,2,128), (ln,0,1,64), (ln,1,2,8)], sT, 4*544)
    sexpr(A, sT, [(sW4,0,None,256)], L_RB)
    vexpr(A, R.rbr, t, [(ln,5,1,1024), (ln,3,2,64), (ln,1,1,32), (ln,2,1,16), (ln,0,1,8)], sT)
    sexpr(A, sT, [(sX,0,None,8*16384), (sG,0,None,4*16384), (sW4,0,None,16384)])
    vexpr(A, R.kv, t, [(ln,0,None,16)], sT)
    sexpr(A, sT, [(sW4,0,None,8192)], L_KX)
    vexpr(A, R.stg, t, [(ln,0,None,16)], sT)
    sexpr(A, sT, [(sW4,0,1,544)], L_RA + 4*544)
    vexpr(A, R.rvr, t, [(ln,0,None,8)], sT)
    for i in range(12):
        if i + 3 < 12:
            A("s_waitcnt vmcnt(32)"); fix(*groups[i]); issue(*groups[i+3])
        else:
            A(f"s_waitcnt vmcnt({16*(11-i)})"); fix(*groups[i])
    A(f"s_load_dwordx2 s[{sT+8}:{sT+9}], s[0:1], {A_MEM0}")
    sexpr(A, sT, [(sJ,0,None,64), (sW4,1,1,32), (sW4,0,1,4)])
    vexpr(A, w_, t, [(ln,0,3,2048), (ln,4,1,16), (ln,5,1,2)], sT)
    A("s_waitcnt lgkmcnt(0)")
    A.srd(T0, sT+8, 16384)
    A(f"buffer_load_ushort v{R.T}, v{w_}, s[{T0}:{T0+3}], 0 offen\n buffer_load_ushort v{u}, v{w_}, s[{T0}:{T0+3}], 0 offen offset:8")
    sexpr(A, sGO, [(sX,0,None,128)], FLG_GO)
    A("s_barrier")
    wait_init(A, t, R.zero, cfg)
    A(f"v_lshl_or_b32 v{R.T}, v{u}, 16, v{R.T}\n v_min_u32 v{R.T}, -2, v{R.T}")
    L = A.label("AT")
    A(f"s_cmp_ge_u32 s{sW4}, 2\n s_cbranch_scc1 {L}")
    for k in range(4): A(f"s_mov_b32 s{sT}, {RING + k*262144}\n buffer_load_dword v{R.t}, v{R.hk}, {ws('s%d' % sT)} offen sc1")
    A(f"{L}:\n s_barrier")
    A(f"s_mov_b32 s{sS}, -1")
    stage_setup(A); stage_load(A)
    A("s_waitcnt vmcnt(0)"); stage_write(A)
    A(f"s_mov_b32 s{sS}, 0\n s_mov_b32 s{sSPIN}, {SPIN}")
    ring_off(A, sRING, 0)

def emit_A_loop(A, cfg, nonlocal_):
    R = RA
    sc = " sc1" if nonlocal_ else ""
    P = "An" if nonlocal_ else "Al"
    m = R.MEM
    def S(c, u): A(f"v_smfmac_f32_16x16x64_bf16 {v(R.ACC+4*u,4)}, {v(m+4*c,4)}, {v(R.W+(c*6+u)*8,8)}, v{R.idx}")
    def ld(c): A(f"buffer_load_dwordx4 {v(m+4*c,4)}, v{R.e1ld}, {ws('s%d' % sRING)} offen offset:{1024*c} sc1")
    def chka(r): A(f"v_max3_u32 v{R.t}, v{r}, v{r+1}, v{r+2}")
    def chkb(r): A(f"v_max_u32 v{R.t}, v{R.t}, v{r+3}\n v_cmp_eq_u32 vcc, -1, v{R.t}")
    def add(mat, h):
        a0 = R.ACC + 8*mat; a1 = a0 + 4*h
        A(f"v_add_f32 v{a0+h}, v{a1}, v{a1+2}\n v_add_f32 v{a0+2+h}, v{a1+1}, v{a1+3}")
    def wr(mat):
        a0 = R.ACC + 8*mat
        o = 8*mat if mat < 2 else 0
        A(f"ds_write2_b64 v{R.raw if mat < 2 else R.rawv}, {v(a0,2)}, {v(a0+2,2)} offset0:{o} offset1:{o+4}")
    def red4(addr, stride, dst):
        for h in range(4): A(f"ds_read_b64 {v(m+2*h,2)}, v{addr} offset:{stride*h}")
        A(f"s_waitcnt lgkmcnt(2)\n v_pk_add_f32 {v(m,2)}, {v(m,2)}, {v(m+2,2)}\n s_waitcnt lgkmcnt(0)\n v_pk_add_f32 {v(m+4,2)}, {v(m+4,2)}, {v(m+6,2)}")
        A(f"v_pk_add_f32 {v(m,2)}, {v(m,2)}, {v(m+4,2)}\n v_cvt_pk_bf16_f32 v{dst}, v{m}, v{m+1}")
    A(f"{P}_tail:")
    add(1,1); wr(1)
    stamp(A, cfg, 3)
    add(2,0); add(2,1); wr(2)
    A(f"s_setprio 0\n s_cmp_ge_u32 s{sW4}, 2\n s_waitcnt lgkmcnt(0)\n s_barrier\n s_cbranch_scc1 {P}_v2")
    red4(R.rvr, RAS, R.T)
    A(f"buffer_store_dword v{R.T}, v{R.vst}, {ws('s%d' % sRING)} offen{sc}")
    A(f"{P}_v2:")
    mark(A, cfg, 3, 0); mark(A, cfg, 4, 32)
    stamp(A, cfg, 4)
    A(f"s_lshl_b32 s{sKVM}, s{sS}, 17\n s_add_u32 s{sKVM}, s{sKVM}, {KVM}")
    A(f"s_cmp_eq_u32 s{sS}, 63\n s_cbranch_scc1 L_rec_lastA")
    if cfg.total: A(f"s_cmp_lg_u32 s{sS}, 7\n s_cbranch_scc1 {P}_t0\n s_memtime s[{sT0}:{sT0+1}]\n s_waitcnt lgkmcnt(0)\n s_mov_b32 s{sRET}, 0\n {P}_t0:")
    ring_off(A, sRINGP, 3); e3_off(A, sE3, sS); ring_off(A, sRING, 1)
    stage_setup(A)
    A(f"s_mov_b32 s{sSPIN}, {SPIN}\n s_lshl_b32 s{sT+1}, s{sS}, 2\n s_add_u32 s{sT+1}, s{sT+1}, 4\n s_sleep {cfg.slp0}")
    flush(A, cfg, R.ACC)
    for i in range(4): A(f"v_mov_b32 v{m+i}, -1")
    A(f"s_setprio 3\n {P}_wb:\n ds_read_b32 v{R.t}, v{R.zero} offset:{L_FB}")
    spin_dn(A)
    A(f"s_waitcnt lgkmcnt(0)\n v_cmp_gt_u32 vcc, s{sT+1}, v{R.t}\n s_cbranch_vccnz {P}_wb")
    stamp(A, cfg, 6)
    A(f"s_cmp_ge_u32 s{sW4}, 2\n s_cbranch_scc1 {P}_h2\n buffer_store_dwordx4 {v(m,4)}, v{R.hk}, {ws('s%d' % sRINGP)} offen{sc}\n {P}_h2:")
    stage_load(A)
    A(f"s_add_u32 s{sS}, s{sS}, 1\n s_mov_b32 s{sSPIN}, {SPIN}")
    stamp(A, cfg, 5)
    A("s_barrier")
    red4(R.rbr, 2048, R.t)
    A(f"buffer_store_dword v{R.t}, v{R.e3st}, {ws('s%d' % sE3)} offen sc1")
    stamp(A, cfg, 7)
    A(f"buffer_store_dword v{R.T}, v{R.pubv}, {ws('s%d' % sKVM)} offen sc1")
    nops(A, cfg.F3)
    def ld3(): A(f"buffer_load_dwordx4 {v(m,4)}, v{R.e3ld}, {ws('s%d' % sE3)} offen sc1")
    ld3()
    A("s_waitcnt vmcnt(3)")
    stage_write(A)
    A("s_waitcnt vmcnt(0)")
    stamp(A, cfg, 8)
    A(f"{P}_r3:")
    A(f"v_mfma_f32_16x16x32_bf16 {v(m+4,4)}, {v(R.SEL,4)}, {v(m,4)}, 0")
    chka(m); chkb(m)
    A(f"s_cbranch_vccnz {P}_slow3\n s_nop 3")
    A(f"v_add_f32_dpp v{m+4}, v{m+4}, v{m+4} row_ror:8 row_mask:0xf bank_mask:0xf\n v_add_f32_dpp v{m+5}, v{m+5}, v{m+5} row_ror:8 row_mask:0xf bank_mask:0xf")
    A(f"v_cvt_pk_bf16_f32 v{R.T}, v{m+4}, v{m+5}")
    A(f"{P}_entry:")
    A(f"buffer_store_dword v{R.T}, v{R.e1st}, {ws('s%d' % sRING)} offen{sc}")
    stamp(A, cfg, 0)
    A("s_waitcnt lgkmcnt(0)")
    for i in range(12): A(f"v_mov_b64 {v(R.ACC+2*i,2)}, 0")
    nops(A, cfg.F1)
    late = []
    sts = states()
    for i, st in enumerate(sts):
        n = len(st); c = st[0]; rest = st[1:]
        if i == 0:
            stamp(A, cfg, 1)
            for k, cc in enumerate(st):
                ld(cc)
                if k < 3: nops(A, cfg.paceA)
            A("s_waitcnt vmcnt(3)")
            stamp(A, cfg, 2)
            chka(m+4*c); chkb(m+4*c)
            A(f"s_cbranch_vccnz {P}_f{nm(st)}")
        A(f"{P}_o{nm(st)}:")
        nx = rest[0]
        us = list(range(6)) if n > 2 else list(range(4))
        k = cfg.ck
        for u in us[:-k]: S(c, u)
        A(f"s_waitcnt vmcnt({n-2})"); chka(m+4*nx); S(c, us[-k]); chkb(m+4*nx)
        for u in us[len(us)-k+1:]: S(c, u)
        if n > 2:
            A(f"s_cbranch_vccnz {P}_f{nm(rest)}")
            if not (i + 1 < len(sts) and sts[i+1] == rest): A(f"s_branch {P}_o{nm(rest)}")
        else:
            fn = f"{nx}p{c}"
            A(f"s_cbranch_vccnz {P}_f{fn}")
            A(f"{P}_o{fn}:")
            S(nx,0); S(nx,1); S(nx,2); S(nx,3); S(c,4); S(c,5)
            A("s_nop 2")
            add(0,0); S(nx,4); add(0,1); S(nx,5); wr(0); add(1,0)
            A(f"s_branch {P}_tail")
            def ffin(fn=fn, nx=nx):
                A(f"{P}_f{fn}:"); ld(nx); retry(A, cfg)
                A("s_waitcnt vmcnt(0)"); chka(m+4*nx); chkb(m+4*nx)
                A(f"s_cbranch_vccz {P}_o{fn}\n s_branch {P}_f{fn}")
            late.append(ffin)
        def fgen(st=st, n=n, c=c, rest=rest):
            nxt = rest + (c,)
            A(f"{P}_f{nm(st)}:"); ld(c); retry(A, cfg)
            A(f"s_waitcnt vmcnt({n-1})"); chka(m+4*nxt[0]); chkb(m+4*nxt[0])
            A(f"s_cbranch_vccz {P}_o{nm(nxt)}\n s_branch {P}_f{nm(nxt)}")
        late.append(fgen)
    for f in late: f()
    A(f"{P}_slow3:")
    ld3(); retry(A, cfg, 0x10000)
    A(f"s_waitcnt vmcnt(0)\n s_branch {P}_r3")

class RB:
    pubk = 0; idx = 1; e2ld = 2; e2ld2 = 3; e2st = 4; rar = 5; rbw = 6; kxr = 7; vx = 8; zero = 9; t = 10; pub = 11; fl = 12; sigv = 13; siga = 14
    bias = 15; nm = 16; rl = 17; VMP = 18; PM = 26; ONES = 30; P = 36; L = 40; X0 = 44; X1 = 48; SM = 52; QK = 56; V = 72
    VM = 80; OUT = 96; VWX = 112; VX = 128; KX = 160; WO = 192
    P2 = 104

def vwx(A, hook=None):
    R = RB
    for kt in (1, 0):
        acc = R.OUT if kt else R.VM
        for t in range(4):
            for f in range(4):
                c = "0" if f == 0 else v(acc+4*t, 4)
                A(f"v_mfma_f32_16x16x32_bf16 {v(acc+4*t,4)}, {v(R.VX+(kt*4+f)*4,4)}, {v(R.WO+16*t+4*f,4)}, {c}")
                if kt == 0 and hook: hook(4*t + f)
    for kt in (1, 0):
        acc = R.OUT if kt else R.VM
        for t in range(4):
            for i in range(2): A(f"v_cvt_pk_bf16_f32 v{R.VWX+4*t+2*kt+i}, v{acc+4*t+2*i}, v{acc+4*t+2*i+1}")

def prog_load(A): A(f"s_buffer_load_dwordx8 s[{sT+8}:{sT+15}], {ws('s%d' % sFL)} glc")
def prog_min(A):
    A(f"s_min_u32 s{sPROG}, s{sT+8}, s{sT+9}")
    for i in range(2, 8): A(f"s_min_u32 s{sPROG}, s{sPROG}, s{sT+8+i}")
def prog_wait(A, need):
    L = A.label("KW"); D = A.label("KD")
    A(f"s_mov_b32 s{sSPIN}, {SPIN}\n {L}:\n s_cmp_ge_u32 s{sPROG}, s{need}\n s_cbranch_scc1 {D}")
    prog_load(A); spin_dn(A); A("s_waitcnt lgkmcnt(0)"); prog_min(A)
    A(f"s_branch {L}\n {D}:")

def emit_B_prologue(A, cfg):
    R = RB
    ln, t, u, w_ = R.X0, R.X0+1, R.X0+2, R.X0+3
    A(f"v_and_b32 v{ln}, 63, v0\n v_mov_b32 v{R.zero}, 0\n v_and_b32 v{w_}, 127, v0")
    sHB = sT + 7
    sexpr(A, sHB, [(sX,0,None,8), (sG,0,None,4), (sW4,0,None,1)])
    ring_lines(A, R.QK, t, u, w_)
    for i in range(4): A(f"v_mov_b32 v{R.OUT+i}, -1")
    sexpr(A, sT, [(sW4,1,1,2*262144)], RING)
    A(f"buffer_store_dwordx4 {v(R.OUT,4)}, v{R.QK}, {ws('s%d' % sT)} offen sc1\n s_add_u32 s{sT}, s{sT}, 262144\n buffer_store_dwordx4 {v(R.OUT,4)}, v{R.QK}, {ws('s%d' % sT)} offen sc1")
    sexpr(A, sNF, [(sHA,0,None,128), (sJ,0,2,4)], FLG_KVM)
    go_clear(A, R.zero, 4, sNF)
    A("s_barrier")
    A("s_waitcnt vmcnt(0)")
    Lw = A.label("NL")
    A(f"v_mov_b32 v{u}, 1\n v_mov_b32 v{t}, {L_TK+8}\n s_mov_b64 exec, 1\n ds_add_rtn_u32 v{u}, v{t}, v{u}\n s_waitcnt lgkmcnt(0)\n v_readfirstlane_b32 s{sT}, v{u}\n s_mov_b64 exec, -1\n s_nop 2")
    A(f"s_cmp_lg_u32 s{sT}, 3\n s_cbranch_scc1 {Lw}"); arrive(A); A(f"{Lw}:")
    A(f"s_load_dwordx2 s[{sT+12}:{sT+13}], s[0:1], {A_WO}")
    sexpr(A, sT, [(sHB,0,None,128*2048), (sJJ,0,None,128)])
    vexpr(A, R.t, t, [(ln,4,2,8*2048), (ln,0,4,8)], sT)
    A(f"s_mov_b32 s{sPLO}, 0x05040100\n s_mov_b32 s{sPHI}, 0x07060302\n s_waitcnt lgkmcnt(0)")
    A.srd(T0, sT+12, 8*MB)
    TMP = R.VX
    for f in range(4):
        for i in range(8):
            A(f"s_mov_b32 s{sT}, {(32*f+i)*2048}\n buffer_load_dwordx2 {v(TMP+(f*8+i)*2,2)}, v{R.t}, s[{T0}:{T0+3}], s{sT} offen")
    A(f"v_and_b32 v{t}, 2, v{ln}\n v_cmp_eq_u32 vcc, 0, v{t}\n v_mov_b32 v{R.idx}, 0xeeee\n v_mov_b32 v{u}, 0x4444\n v_cndmask_b32 v{R.idx}, v{R.idx}, v{u}, vcc")
    A(f"v_mov_b32 v{R.bias}, 0x7f800000\n v_cndmask_b32 v{R.bias}, v{R.bias}, v{R.zero}, vcc")
    for i in range(18): A(f"v_mov_b32 v{R.VMP+i}, 0")
    for i in range(4): A(f"v_mov_b32 v{R.ONES+i}, 0x3f803f80")
    A(f"s_mov_b32 s{sC}, {hex(CEXP)}")
    sexpr(A, sT, [(sHB,0,None,6144)], 65536)
    vexpr(A, R.e2ld, t, [(ln,0,None,16)], sT); A(f"v_add_u32 v{R.e2ld2}, 4096, v{R.e2ld}")
    sexpr(A, sT, [(sHB,0,None,16384)]); vexpr(A, R.vx, t, [(ln,0,None,16)], sT)
    sexpr(A, sT, [(sW4,0,None,8192)], L_KX); vexpr(A, R.kxr, t, [(ln,0,None,16)], sT)
    sexpr(A, sT, [(sW4,0,None,544)], L_RA); vexpr(A, R.rar, t, [(ln,0,None,8)], sT)
    sexpr(A, sT, [(sW4,0,None,2048)], L_RB); vexpr(A, R.rbw, t, [(ln,0,None,16)], sT)
    A(f"v_lshlrev_b32 v{R.siga}, 2, v{ln}\n v_mov_b32 v{R.sigv}, 1\n ds_write_b32 v{R.siga}, v{R.zero}")
    sexpr(A, sT, [(sHA,0,None,6144), (sJ,0,2,1024), (sW4,0,None,256)], 65536)
    vexpr(A, R.e2st, t, [(ln,0,None,4)], sT)
    sexpr(A, sT, [(sHA,0,None,4096), (sJ,0,2,512), (sW4,0,None,128)])
    vexpr(A, R.pubk, t, [(ln,4,2,32), (ln,2,1,16), (ln,0,2,4)], sT)
    A(f"v_and_b32 v{t}, 8, v{ln}\n v_cmp_eq_u32 vcc, 0, v{t}\n v_mov_b32 v{u}, {OOB}\n s_nop 0\n v_cndmask_b32 v{R.pubk}, v{R.pubk}, v{u}, vcc")
    sexpr(A, sPFB, [(sX,0,None,8*16384), (sG,0,None,4*16384), (sJJ,0,None,4096), (sW4,0,None,1024)], 2*524288)
    sexpr(A, sFL, [(sX,0,None,256), (sG,0,None,128)], FLG_KVX)
    A("s_waitcnt vmcnt(0)")
    for f in range(4):
        for i2 in range(4):
            X = TMP + (f*8+2*i2)*2; Y = X + 2
            for tt in range(4):
                A(f"v_perm_b32 v{R.WO+16*tt+4*f+i2}, v{Y+(tt>>1)}, v{X+(tt>>1)}, s{sPHI if tt & 1 else sPLO}")
    A("s_barrier")
    wait_init(A, t, R.zero, cfg)
    A(f"s_cmp_eq_u32 s{sW4}, 0\n s_cselect_b32 s{sPROG}, 0, 64\n s_mov_b32 s{sT}, 2")
    prog_wait(A, sT)
    A("s_waitcnt lgkmcnt(0)\n s_barrier")
    for i in range(8):
        A(f"s_mov_b32 s{sT}, {8192+(i>>2)*4096}\n buffer_load_dwordx4 {v(R.VX+4*i,4)}, v{R.vx}, {ws('s%d' % sT)} offen offset:{(i&3)*1024} sc1")
    A("s_waitcnt vmcnt(0)")
    vwx(A)
    for i in range(4, 8):
        A(f"s_mov_b32 s{sT}, {524288+8192+4096}\n buffer_load_dwordx4 {v(R.VX+4*i,4)}, v{R.vx}, {ws('s%d' % sT)} offen offset:{(i&3)*1024} sc1")
        A(f"s_mov_b32 s{sT}, 4096\n buffer_load_dwordx4 {v(R.KX+4*i,4)}, v{R.vx}, {ws('s%d' % sT)} offen offset:{(i&3)*1024} sc1")
    A(f"s_mov_b32 s{sS}, 0")

def emit_B_loop(A, cfg, nonlocal_):
    R = RB
    sc = " sc1" if nonlocal_ else ""
    P = "Bn" if nonlocal_ else "Bl"
    regs6 = [R.QK+4*i for i in range(6)]
    def ld(i): A(f"buffer_load_dwordx4 {v(regs6[i],4)}, v{R.e2ld if i<4 else R.e2ld2}, {ws('s%d' % sRING)} offen offset:{1024*(i&3)} sc1")
    def zero():
        for i in range(8): A(f"v_mov_b64 {v(R.VM+2*i,2)}, 0")
    def chka(r): A(f"v_max3_u32 v{R.t}, v{r}, v{r+1}, v{r+2}")
    def chkb(r): A(f"v_max_u32 v{R.t}, v{R.t}, v{r+3}\n v_cmp_eq_u32 vcc, -1, v{R.t}")
    A(f"{P}_loop:")
    ring_off(A, sRING, 0)
    A(f"s_add_u32 s{sVX}, s{sS}, 1\n s_lshl_b32 s{sVX}, s{sVX}, 19\n s_lshl_b32 s{sKVM}, s{sS}, 17\n s_add_u32 s{sKVM}, s{sKVM}, {KVM}")
    zero()
    for i in range(6): A(f"v_mov_b64 {v(R.X0+2*i,2)}, 0")
    A(f"s_add_u32 s{sT}, s{sS}, 4\n s_min_u32 s{sT}, s{sT}, 64")
    prog_wait(A, sT)
    A(f"s_mov_b32 s{sSPIN}, {SPIN}\n s_waitcnt lgkmcnt(0)")
    stamp(A, cfg, 0)
    A("s_setprio 3\n s_barrier")
    o = R.OUT
    for w in range(4): A(f"ds_read_b64 {v(o+2*w,2)}, v{R.rar} offset:{RAS*w}")
    A(f"s_waitcnt lgkmcnt(2)\n v_pk_add_f32 {v(o,2)}, {v(o,2)}, {v(o+2,2)}\n s_waitcnt lgkmcnt(0)\n v_pk_add_f32 {v(o+4,2)}, {v(o+4,2)}, {v(o+6,2)}")
    A(f"v_pk_add_f32 {v(o,2)}, {v(o,2)}, {v(o+4,2)}")
    A(f"v_cvt_pk_bf16_f32 v{R.pub}, v{o}, v{o+1}\n buffer_store_dword v{R.pub}, v{R.e2st}, {ws('s%d' % sRING)} offen{sc}")
    stamp(A, cfg, 2)
    A(f"s_cmp_eq_u32 s{sS}, 63\n s_cbranch_scc1 L_rec_lastB")
    for k in range(4): A(f"ds_read_b128 {v(R.KX+4*k,4)}, v{R.kxr} offset:{1024*k}")
    for k in range(4): A(f"ds_read_b128 {v(R.VX+4*k,4)}, v{R.kxr} offset:{4096+1024*k}")
    nops(A, cfg.F2)
    X0, X1, SM = R.OUT, R.OUT+4, R.OUT+12
    def MS(k, f, last=False):
        D = (R.X0, R.X1, R.SM)[k]; q = R.QK + 4*f
        Aop = (R.KX+4*f, R.KX+16+4*f, q)[k]
        A(f"v_mfma_f32_16x16x32_bf16 {v((X0,X1,SM)[k] if last else D,4)}, {v(Aop,4)}, {v(q,4)}, {v(D,4)}")
    late = []
    sts = states(); done1 = set()
    for i, st in enumerate(sts):
        n = len(st); c = st[0]; rest = st[1:]
        if i == 0:
            for k, cc in enumerate(st):
                ld(cc)
                if k < 3: nops(A, cfg.paceB)
            A(f"s_waitcnt vmcnt(3) lgkmcnt(0)")
            stamp(A, cfg, 3)
            chka(R.QK+4*c); chkb(R.QK+4*c)
            A(f"s_cbranch_vccnz {P}_f{nm(st)}")
        A(f"{P}_o{nm(st)}:")
        nx = rest[0]
        if n > 2:
            MS(0, c); MS(1, c)
            A(f"s_waitcnt vmcnt({n-2})"); chka(R.QK+4*nx); chkb(R.QK+4*nx); MS(2, c)
            A(f"s_cbranch_vccnz {P}_f{nm(rest)}")
            if not (i + 1 < len(sts) and sts[i+1] == rest): A(f"s_branch {P}_o{nm(rest)}")
        else:
            MS(0, c); ld(4); MS(1, c); ld(5); MS(2, c)
            if nx in done1:
                A(f"s_branch {P}_k{nx}")
            else:
                done1.add(nx)
                A(f"{P}_k{nx}:\n s_waitcnt vmcnt(2)")
                MS(0, nx, True); chka(R.QK+4*nx); MS(1, nx, True); chkb(R.QK+4*nx); MS(2, nx, True)
                A(f"s_cbranch_vccz {P}_soft")
                ld(nx); ld(4); ld(5); retry(A, cfg)
                A(f"s_branch {P}_k{nx}")
        def fgen(st=st, n=n, c=c, rest=rest):
            nxt = rest + (c,)
            A(f"{P}_f{nm(st)}:"); ld(c); retry(A, cfg)
            A(f"s_waitcnt vmcnt({n-1})"); chka(R.QK+4*nxt[0]); chkb(R.QK+4*nxt[0])
            A(f"s_cbranch_vccz {P}_o{nm(nxt)}\n s_branch {P}_f{nm(nxt)}")
        late.append(fgen)
    for f in late: f()
    A(f"{P}_soft:")
    stamp(A, cfg, 4)
    A(f"ds_add_u32 v{R.siga}, v{R.sigv}")
    def SV(f, t): A(f"v_smfmac_f32_16x16x64_bf16 {v(R.VM+4*t,4)}, {v(R.V+4*f,4)}, {v(R.WO+16*t+8*f,8)}, v{R.idx}")
    m, mt, m2, m3 = R.L, R.L+1, R.L+2, R.L+3
    A("s_nop 1")
    A(f"v_max3_f32 v{m}, v{X0}, v{X0+1}, v{X0+2}\n v_max3_f32 v{m}, v{m}, v{X0+3}, v{X1}")
    A(f"v_max3_f32 v{m}, v{m}, v{X1+1}, v{X1+2}\n s_nop 0\n v_max3_f32 v{m}, v{m}, v{X1+3}, v{SM+2}")
    A(f"v_max_f32 v{mt}, v{m}, v{SM+3}\n v_max_f32 v{m}, v{m}, v{SM+3}\n s_nop 1")
    A(f"v_permlane16_swap_b32 v{m}, v{mt}")
    A(f"v_max_f32 v{m2}, v{m}, v{mt}\n v_max_f32 v{m3}, v{m}, v{mt}\n s_nop 1")
    sv = [(f, t) for f in range(2) for t in range(4)]
    def nextsv():
        if not sv: return
        f, t = sv.pop(0)
        if t == 0: A(f"s_waitcnt vmcnt({1-f})")
        SV(f, t)
    A(f"v_permlane32_swap_b32 v{m2}, v{m3}")
    A(f"v_max_f32 v{m}, v{m2}, v{m3}\n v_fma_f32 v{R.nm}, v{m}, s{sC}, v{R.bias}")
    stamp(A, cfg, 5)
    prs = [X0, X0+2, X1, X1+2, SM+2]
    dst = [R.P, R.P+1, R.P+2, R.P+3, R.PM]
    for i, p in enumerate(prs):
        if cfg.svl <= 2+2*i: nextsv()
        A(f"v_fma_f32 v{p}, v{p}, s{sC}, -v{R.nm}\n v_fma_f32 v{p+1}, v{p+1}, s{sC}, -v{R.nm}\n v_exp_f32 v{p}, v{p}")
        if cfg.svl <= 3+2*i: nextsv()
        A(f"v_exp_f32 v{p+1}, v{p+1}")
        if i > 0: A(f"v_cvt_pk_bf16_f32 v{dst[i-1]}, v{prs[i-1]}, v{prs[i-1]+1}")
    assert not sv
    stamp(A, cfg, 6)
    def dpp(d, s_): A(f"v_mov_b32_dpp v{d}, v{s_} quad_perm:[2,3,0,1] row_mask:0xf bank_mask:0xf")
    def vmadd(t):
        a = R.VM + 4*t
        A(f"v_add_f32 v{a}, v{a}, v{a+2}\n v_add_f32 v{a+1}, v{a+1}, v{a+3}")
    def vmcvt(t): A(f"v_cvt_pk_bf16_f32 v{R.VMP+2*t}, v{R.VM+4*t}, v{R.VM+4*t+1}")
    def M(D, Aop, Bop, first): A(f"v_mfma_f32_16x16x32_bf16 {v(D,4)}, {v(Aop,4)}, {v(Bop,4)}, {'0' if first else v(D,4)}")
    def fin(k):
        a = R.OUT + 4*k
        for i in range(4): A(f"v_mul_f32 v{a+i}, v{a+i}, v{R.rl}")
        A(f"ds_write_b128 v{R.rbw}, {v(a,4)} offset:{1024*k}")
    O0, O1 = R.OUT, R.OUT + 4
    A(f"v_cvt_pk_bf16_f32 v{R.PM}, v{SM+2}, v{SM+3}")
    A(f"{P}_fin:")
    dpp(R.P2, R.P)
    M(R.L, R.ONES, R.P, True); dpp(R.P2+1, R.P+1); dpp(R.P2+2, R.P+2)
    M(R.L, R.ONES+2, R.PM, False); dpp(R.P2+3, R.P+3); dpp(R.PM+2, R.PM)
    M(O0, R.VWX, R.P, True); vmadd(0)
    M(O0, R.VWX+4, R.P2, False); vmadd(1)
    vmcvt(0); vmcvt(1)
    M(O1, R.VWX+8, R.P, True)
    A(f"v_add_f32_dpp v{R.rl}, v{R.L}, v{R.L} quad_perm:[2,3,0,1] row_mask:0xf bank_mask:0xf")
    M(O0, R.VMP, R.PM, False); vmadd(2); vmadd(3)
    M(O1, R.VWX+12, R.P2, False); vmcvt(2); vmcvt(3)
    A(f"v_rcp_f32 v{R.rl}, v{R.rl}\n v_max3_u32 v{R.t}, v{R.V}, v{R.V+1}, v{R.V+2}")
    M(O1, R.VMP+4, R.PM, False)
    stamp(A, cfg, 7)
    fin(0)
    A(f"v_max3_u32 v{R.t}, v{R.t}, v{R.V+3}, v{R.V+4}\n v_max3_u32 v{R.t}, v{R.t}, v{R.V+5}, v{R.V+6}\n v_max_u32 v{R.t}, v{R.t}, v{R.V+7}")
    fin(1)
    A(f"v_cmp_eq_u32 vcc, -1, v{R.t}\n s_cbranch_vccnz {P}_slow")
    A("s_waitcnt lgkmcnt(0)\n s_barrier\n s_setprio 0")
    stamp(A, cfg, 8)
    A(f"buffer_store_dword v{R.pub}, v{R.pubk}, {ws('s%d' % sKVM)} offen sc1")
    A(f"s_cmp_lg_u32 s{sW4}, 3\n s_cbranch_scc1 {P}_nf\n s_min_u32 s{sT+3}, s{sS}, 1\n s_atomic_add s{sT+3}, s[{WS}:{WS+1}], s{sNF}\n {P}_nf:")
    A(f"s_add_u32 s{sT+2}, s{sVX}, s{sPFB}")
    for i in range(8): A(f"s_buffer_load_dword s{sT+1}, {ws('s%d' % (sT+2))} offset:{64*i}")
    A(f"s_add_u32 s{sVX+1}, s{sVX}, {4096 + 8192 + 524288}\n s_add_u32 s{sVX}, s{sVX}, 4096")
    nops(A, cfg.QB)
    def ldk(i): A(f"buffer_load_dwordx4 {v(R.KX+16+4*i,4)}, v{R.vx}, {ws('s%d' % sVX)} offen offset:{i*1024} sc1")
    def ldv(i): A(f"buffer_load_dwordx4 {v(R.VX+16+4*i,4)}, v{R.vx}, {ws('s%d' % (sVX+1))} offen offset:{i*1024} sc1")
    rest = [lambda i=i: ldk(i) for i in range(cfg.K3, 4)] + [lambda i=i: ldv(i) for i in range(4)]
    for i in range(cfg.K3): ldk(i)
    def hook(k):
        if k >= cfg.VD and rest: rest.pop(0)()
    vwx(A, hook)
    assert not rest
    A("s_waitcnt lgkmcnt(0)")
    for i in range(8, 16): A(f"s_buffer_load_dword s{sT+1}, {ws('s%d' % (sT+2))} offset:{64*i}")
    flush(A, cfg, R.OUT)
    A(f"s_add_u32 s{sS}, s{sS}, 1\n s_branch {P}_loop")
    A(f"{P}_slow:"); ld(4); ld(5); retry(A, cfg, 0x10000)
    zero()
    A(f"s_waitcnt vmcnt(0)")
    for f in range(2):
        for t in range(4): SV(f, t)
    A(f"s_nop 7\n s_branch {P}_fin")

def emit_rec(A, cfg):
    A(f"L_rec:\n s_and_b32 s{sW4}, s{sW}, 3\n s_lshr_b32 s{sG}, s{sJ}, 4\n s_and_b32 s{sJJ}, s{sJ}, 15")
    sexpr(A, sHA, [(sX,0,None,8), (sJ,2,None,1)])
    A(f"s_cmp_ge_u32 s{sW}, 4\n s_cbranch_scc1 L_rec_B")
    cfg.cur = 'A'
    emit_A_prologue(A, cfg)
    A(f"s_setprio 3\n s_cmp_lg_u32 s{sMODE}, 0\n s_cbranch_scc1 An_entry\n s_branch Al_entry")
    emit_A_loop(A, cfg, False)
    emit_A_loop(A, cfg, True)
    A("L_rec_lastA:")
    A(f"buffer_store_dword v{RA.T}, v{RA.pubv}, {ws('s%d' % sKVM)} offen sc1\n s_waitcnt vmcnt(0)\n s_barrier\n s_branch L_done")
    cfg.cur = 'B'
    A("L_rec_B:")
    emit_B_prologue(A, cfg)
    A(f"s_cmp_lg_u32 s{sMODE}, 0\n s_cbranch_scc1 Bn_loop")
    emit_B_loop(A, cfg, False)
    emit_B_loop(A, cfg, True)
    A("L_rec_lastB:")
    A(f"buffer_store_dword v{RB.pub}, v{RB.pubk}, {ws('s%d' % sKVM)} offen sc1\n s_waitcnt vmcnt(0)\n s_barrier")
    A(f"s_cmp_lg_u32 s{sW4}, 3\n s_cbranch_scc1 L_done\n s_mov_b32 s{sT+3}, 2\n s_atomic_add s{sT+3}, s[{WS}:{WS+1}], s{sNF}\n s_branch L_done")
```

```python
import sys
from common import *
import rec, gemm, convb
NAME = "concat_heads__memory_aug_recurrent_mem_tr__ssm_conv_h3__prompt_kernel"

def gen(cfg):
    A = Asm()
    A(f"s_cmp_ge_u32 s2, 256\n s_cbranch_scc1 L_end")
    A(f"s_load_dwordx4 s[{sT}:{sT+3}], s[0:1], {D_DBG}\n s_getreg_b32 s{sX}, hwreg(HW_REG_XCC_ID, 0, 3)\n v_lshrrev_b32 v1, 6, v0\n v_mov_b32 v5, {L_TK}")
    if cfg.dev: A(f"s_memrealtime s[100:101]\n s_mov_b32 s{sRET}, 0\n s_mov_b32 s{sABT}, 0\n s_mov_b32 s{sT0}, 0")
    if cfg.fakex: A(f"s_and_b32 s{sX}, s{sX}, {cfg.fakex}")
    A(f"v_readfirstlane_b32 s{sW}, v1\n s_waitcnt lgkmcnt(0)")
    if cfg.dev: A("s_mov_b32 s78, s100")
    A.srd(DBG, sT, 256); A.srd(WS, sT+2, WS_BYTES)
    A(f"s_cmp_lg_u32 s{sW}, 0\n s_cbranch_scc1 L_t1")
    A(f"s_lshl_b32 s{sT+4}, s{sX}, 5\n s_mov_b32 s{sJ}, 1\n s_atomic_add s{sJ}, s[{sT}:{sT+1}], s{sT+4} glc\n s_waitcnt lgkmcnt(0)")
    A(f"s_cmp_lt_u32 s{sJ}, 32\n s_cbranch_scc1 L_t0")
    A(f"s_mov_b32 s{sJ}, 1\n s_atomic_add s{sJ}, s[{sT}:{sT+1}], 8 glc\n v_lshlrev_b32 v2, 2, v0\n s_mov_b32 s{sSPIN}, {SPIN}\n s_waitcnt lgkmcnt(0)")
    A(f"L_t2:\n buffer_load_dword v3, v2, s[{DBG}:{DBG+3}], 0 offen sc1")
    spin_dn(A)
    A(f"s_waitcnt vmcnt(0)\n s_mov_b32 s{sT+4}, 0")
    for x in range(8): A(f"v_readlane_b32 s{sT+8+x}, v3, {8*x}\n s_add_u32 s{sT+4}, s{sT+4}, s{sT+8+x}")
    A(f"s_cmp_lt_u32 s{sT+4}, 256\n s_cbranch_scc1 L_t2")
    for x in range(8):
        A(f"s_min_u32 s{sT+4}, s{sT+8+x}, 32\n s_add_u32 s{sJ}, s{sJ}, s{sT+4}\n s_mov_b32 s{sX}, {x}\n s_cmp_lt_u32 s{sJ}, 32\n s_cbranch_scc1 L_t0\n s_sub_u32 s{sJ}, s{sJ}, 32")
    A("s_branch L_abort")
    A(f"L_t0:\n s_lshl_b32 s{sT+4}, s{sX}, 5\n s_add_u32 s{sT+4}, s{sT+4}, s{sJ}\n v_mov_b32 v8, s{sT+4}\n v_mov_b32 v9, 0\n v_mov_b32 v10, 0\n v_mov_b32 v11, 0\n ds_write_b128 v5, v[8:11]\n s_waitcnt lgkmcnt(0)")
    A(f"L_t1:\n s_barrier\n ds_read_b32 v4, v5\n s_waitcnt lgkmcnt(0)\n v_readfirstlane_b32 s{sJ}, v4\n s_nop 3\n s_bfe_u32 s{sX}, s{sJ}, 0x30005\n s_and_b32 s{sJ}, s{sJ}, 31")
    mark(A, cfg, 0)
    A(f"s_cmp_lt_u32 s{sX}, 4\n s_cbranch_scc1 L_rec\n s_cmp_ge_u32 s{sJ}, 24\n s_cbranch_scc1 L_o\n s_cmp_ge_u32 s{sJ}, 16\n s_cbranch_scc1 L_q")
    gemm.emit_kv(A, cfg)
    if cfg.dev: A(f"s_memrealtime s[{sT0}:{sT0+1}]\n s_waitcnt lgkmcnt(0)")
    convb.emit_b(A, cfg)
    gemm.emit_q(A, cfg)
    gemm.emit_o(A, cfg)
    A("L_abort:")
    if cfg.dev: A(f"s_mov_b32 s{sABT}, 0xdead")
    A("L_done:")
    if cfg.marks:
        sexpr(A, sT, [(sX,0,None,32*8*32), (sJ,0,None,8*32), (sW,0,None,32)], STAT + 65536)
        A(f"s_mov_b64 exec, 1\n v_mov_b32 v1, s{sT}")
        for k in range(5): A(f"v_mov_b32 v{4+k}, s{sST+2*k}")
        A(f"buffer_store_dwordx4 v[4:7], v1, {ws()} offen\n buffer_store_dword v8, v1, {ws()} offen offset:16\n s_waitcnt vmcnt(0)")
    if cfg.dev:
        A(f"s_mov_b64 exec, -1\n s_waitcnt lgkmcnt(0)\n s_memtime s[{sST+10}:{sST+11}]\n s_memrealtime s[{sST+12}:{sST+13}]\n s_waitcnt lgkmcnt(0)\n s_sub_u32 s{sST+3}, s{sST+10}, s{sT0}")
        sexpr(A, sT, [(sX,0,None,32*8*32), (sJ,0,None,8*32), (sW,0,None,32)], STAT)
        A(f"v_mov_b32 v1, s{sT}\n v_mov_b32 v4, s78\n v_mov_b32 v5, s{sST+12}\n v_mov_b32 v6, s{sT0}\n v_mov_b32 v7, s{sST+3}\n v_mov_b32 v8, s{sRET}\n v_mov_b32 v9, s{sABT}\n v_mov_b32 v10, s{sS}\n s_lshl_b32 s{sT}, s{sMODE}, 8\n s_or_b32 s{sT}, s{sT}, s{sPAR}\n v_mov_b32 v11, s{sT}")
        A(f"s_mov_b64 exec, 1\n buffer_store_dwordx4 v[4:7], v1, {ws()} offen\n buffer_store_dwordx4 v[8:11], v1, {ws()} offen offset:16\n s_waitcnt vmcnt(0)")
    A("L_end:\n s_endpgm")
    rec.emit_rec(A, cfg)
    head = open("header.txt").read()
    return head + header([f"; @launch grid=(256,1,1) block=(512,1,1) lds={LDS_BYTES}"]) + kernel_begin(NAME) + A.text() + RODATA + descriptor(NAME, 256, 256)

if __name__ == "__main__":
    kw = eval(sys.argv[2]) if len(sys.argv) > 2 else {}
    open(sys.argv[1], "w").write(gen(Cfg(**kw)))
```
